```python
import torch

def _softmax(x, axis=-1):
    return torch.softmax(x, dim=axis)
def _gelu(x):
    return torch.nn.functional.gelu(x, approximate="tanh")
def _silu(x):
    return torch.nn.functional.silu(x)
def _sigmoid(x):
    return torch.sigmoid(x)
def _layernorm(x, axis=-1, eps=1e-5):
    m = x.mean(dim=axis, keepdim=True)
    v = x.var(dim=axis, keepdim=True, unbiased=False)
    return (x - m) / torch.sqrt(v + eps)
def _scatter_add(tgt, idx, src, axis=0):
    return tgt.clone().index_add_(axis, idx, src)
def _segment_sum(src, seg, n):
    out = torch.zeros((n,) + src.shape[1:], dtype=src.dtype)
    return out.index_add_(0, seg, src)
def _pad(x, pw):
    flat = tuple(v for pair in reversed(pw) for v in pair)
    return torch.nn.functional.pad(x, flat)

kernel_name = 'gated_mix__mha_block__ssm_conv_s5__prompt'

def setup_inputs():

    _w = (lambda a: (lambda t: t.to(torch.bfloat16) if t.is_floating_point() else t)(torch.as_tensor(a)))
    def _A_setup():
        B, S, D, H = 1, 2048, 576, 32
        return {
            "x": _w((lambda *s: torch.randn(*s, dtype=torch.bfloat16) * 0.05)(B, S, D)),
            "wqkv": _w((lambda *s: torch.randn(*s, dtype=torch.bfloat16) * 0.8)(D, 3 * D)),
            "wo": _w((lambda *s: torch.randn(*s, dtype=torch.bfloat16) * 0.05)(D, D)),
        }
    _A_in = _A_setup()

    def _B_setup():
        B, S, D = 1, 2048, 576
        P = D
        Lambda_re = -0.5 * (lambda _x: torch.exp(torch.as_tensor(_x)))((lambda *s: torch.randn(*s, dtype=torch.bfloat16) * 0.4)(P))
        Lambda_im = (lambda *s: torch.randn(*s, dtype=torch.bfloat16) * 0.8)(P) * 1.0
        B_re = (lambda *s: torch.randn(*s, dtype=torch.bfloat16) * 0.8)(P, D) * (D ** -0.5)
        B_im = (lambda *s: torch.randn(*s, dtype=torch.bfloat16) * 0.8)(P, D) * (D ** -0.5)
        C_re = (lambda *s: torch.randn(*s, dtype=torch.bfloat16) * 0.8)(D, P) * (P ** -0.5)
        C_im = (lambda *s: torch.randn(*s, dtype=torch.bfloat16) * 0.8)(D, P) * (P ** -0.5)
        log_dt = (lambda *s: torch.randn(*s, dtype=torch.bfloat16) * 0.4)(P) * 0.3 - 2.0
        Dskip = (lambda *s: torch.randn(*s, dtype=torch.bfloat16) * 0.1)(D)
        return {
            "x": _w((lambda *s: torch.randn(*s, dtype=torch.bfloat16) * 0.05)(B, S, D)),
            "Lambda_re": _w(Lambda_re),
            "Lambda_im": _w(Lambda_im),
            "B_re": _w(B_re),
            "B_im": _w(B_im),
            "C_re": _w(C_re),
            "C_im": _w(C_im),
            "log_dt": _w(log_dt),
            "Dskip": _w(Dskip),
        }
    _B_in = _B_setup()

    return {
        "A_x": _A_in["x"],
        "A_wqkv": _A_in["wqkv"],
        "A_wo": _A_in["wo"],
        "B_x": _B_in["x"],
        "B_Lambda_re": _B_in["Lambda_re"],
        "B_Lambda_im": _B_in["Lambda_im"],
        "B_B_re": _B_in["B_re"],
        "B_B_im": _B_in["B_im"],
        "B_C_re": _B_in["C_re"],
        "B_C_im": _B_in["C_im"],
        "B_log_dt": _B_in["log_dt"],
        "B_Dskip": _B_in["Dskip"],
        "gate_w": _w((lambda *s: torch.randn(*s, dtype=torch.bfloat16) * 0.05)(576) * 16.0),
    }

def reference(A_x, A_wqkv, A_wo, B_x, B_Lambda_re, B_Lambda_im, B_B_re, B_B_im, B_C_re, B_C_im, B_log_dt, B_Dskip, gate_w):
    def _A_ref(x, wqkv, wo):
        B, S, D = x.shape
        H = 32
        Dh = D // H
        qkv = (lambda x, *d: x.permute(*d))((x @ wqkv).reshape(B, S, 3, H, Dh), 2, 0, 3, 1, 4)
        q, k, v = qkv[0], qkv[1], qkv[2]
        scores = torch.einsum("bhqd,bhkd->bhqk", q, k) * (Dh ** -0.5)
        p = _softmax(scores, axis=-1)
        o = torch.einsum("bhqk,bhkd->bhqd", p, v)
        return (lambda x, *d: x.permute(*d))(o, 0, 2, 1, 3).reshape(B, S, D) @ wo

    def _B_ref(x, Lambda_re, Lambda_im, B_re, B_im, C_re, C_im, log_dt, Dskip):
        Bsz, L, H = x.shape
        Lam = Lambda_re + 1j * Lambda_im
        Bmat = B_re + 1j * B_im
        Cmat = C_re + 1j * C_im
        dt = torch.exp(log_dt)
        Lam_bar = torch.exp(dt * Lam)
        B_bar = ((Lam_bar - 1.0) / Lam)[:, None] * Bmat
        Bu = torch.einsum("bld,pd->blp", x + 0j, B_bar)
        h = torch.zeros_like(Bu[:, 0, :])
        hs = []
        for t in range(L):
            h = Lam_bar[None, :] * h + Bu[:, t, :]
            hs.append(h)
        hseq = torch.stack(hs, 1)
        y = 2.0 * torch.einsum("blp,dp->bld", hseq, Cmat).real + x * Dskip[None, None, :]
        return y

    x = A_x
    g = _sigmoid((x * gate_w).sum(-1, keepdims=True))
    a = _A_ref(x, A_wqkv, A_wo)
    b = _B_ref(x, B_Lambda_re, B_Lambda_im, B_B_re, B_B_im, B_C_re, B_C_im, B_log_dt, B_Dskip)
    return g * a + (1 - g) * b
```

```python
import re

class Asm:
    def __init__(self):
        self.lines = []
    def __call__(self, s=""):
        for l in s.split("\n"):
            l = l.strip()
            if l:
                self.lines.append(l)
    def label(self, name):
        self.lines.append(name + ":")
    def text(self):
        out = []
        for l in self.lines:
            out.append(l if (l.endswith(":") or l.startswith(".")) else "    " + l)
        return "\n".join(out) + "\n"

def vr(a, n=1):
    return f"v{a}" if n == 1 else f"v[{a}:{a+n-1}]"
def ar(a, n=1):
    return f"a{a}" if n == 1 else f"a[{a}:{a+n-1}]"
def sr(a, n=1):
    return f"s{a}" if n == 1 else f"s[{a}:{a+n-1}]"

_REG = re.compile(r"^(-|abs\()?([vas])(\d+|\[(\d+):(\d+)\])\)?$")
def regs_of(tok):
    tok = tok.strip()
    if tok in ("vcc", "exec"):
        return {tok + "_lo", tok + "_hi"}
    if tok in ("vcc_lo", "vcc_hi", "exec_lo", "exec_hi", "m0"):
        return {tok}
    t = tok
    if t.startswith("-"): t = t[1:]
    if t.startswith("|") and t.endswith("|"): t = t[1:-1]
    if t.startswith("abs(") and t.endswith(")"): t = t[4:-1]
    m = re.match(r"^([vas])(\d+)$", t)
    if m: return {m.group(1) + m.group(2)}
    m = re.match(r"^([vas])\[(\d+):(\d+)\]$", t)
    if m: return {m.group(1) + str(i) for i in range(int(m.group(2)), int(m.group(3)) + 1)}
    return set()

TRANS = ("v_exp_f32", "v_log_f32", "v_rcp_f32", "v_rsq_f32", "v_sqrt_f32", "v_sin_f32", "v_cos_f32",
         "v_exp_f16", "v_rcp_iflag_f32")
class Ins:
    def __init__(self, line):
        self.line = line
        code = line.split(";")[0].strip()
        self.code = code
        parts = code.split(None, 1)
        self.op = parts[0]
        rest = parts[1] if len(parts) > 1 else ""
        ops, cur, depth = [], "", 0
        for ch in rest:
            if ch in "[(": depth += 1
            if ch in "])": depth -= 1
            if ch == "," and depth == 0:
                ops.append(cur.strip()); cur = ""
            else:
                cur += ch
        if cur.strip(): ops.append(cur.strip())
        self.mods = ""
        if ops:
            sp = ops[-1].split(None, 1)
            ops[-1] = sp[0]
            self.mods = sp[1] if len(sp) > 1 else ""
        self.ops = ops
        op = self.op
        R = [regs_of(o) for o in ops]
        dst, src = set(), set()
        self.valu = op.startswith("v_") and not op.startswith("v_mfma") and not op.startswith("v_smfmac")
        self.mfma = op.startswith("v_mfma")
        self.vmem = op.startswith("buffer_") or op.startswith("global_") or op.startswith("flat_")
        self.ds = op.startswith("ds_")
        self.salu = op.startswith("s_")
        self.trans = any(op.startswith(t) for t in TRANS)
        self.dpp = ("_dpp" in op) or ("quad_perm" in self.mods) or ("row_" in self.mods) or ("wave_sh" in self.mods)
        self.permlane = op.startswith("v_permlane")
        self.readlane = op.startswith("v_readlane") or op.startswith("v_readfirstlane")
        self.lds_dma = self.vmem and (re.search(r"\blds\b", self.mods) is not None or "_lds_" in op)
        self.store = self.vmem and ("store" in op or "atomic" in op)
        self.wide_store = self.vmem and "store" in op and ("x4" in op or "x3" in op)
        self.srcC = set(); self.srcAB = set(); self.data = set()
        if self.mfma:
            dst = R[0]; self.srcAB = R[1] | R[2]; self.srcC = R[3]; src = self.srcAB | self.srcC
            self.passes = 8 if ("32x32" in op) else 4
        elif op.startswith("v_cmpx"):
            dst = R[0] | {"exec_lo", "exec_hi"}; src = set().union(*R[1:])
        elif op.startswith("v_cmp"):
            dst = R[0]; src = set().union(*R[1:])
        elif self.permlane:
            dst = R[0] | R[1]; src = R[0] | R[1]
        elif op.startswith(("v_add_co", "v_sub_co", "v_addc_co", "v_subb_co", "v_div_scale")):
            dst = R[0] | R[1]; src = set().union(*R[2:])
        elif self.valu:
            dst = R[0] if R else set(); src = set().union(*R[1:]) if len(R) > 1 else set()
            if op.startswith(("v_fmac", "v_dot2c", "v_pk_fmac", "v_writelane")) or self.dpp or "PRESERVE" in self.mods:
                src |= dst
            if op.startswith("v_cndmask") and len(ops) == 3: src |= {"vcc_lo", "vcc_hi"}
        elif self.vmem:
            if self.lds_dma:
                src = set().union(*R) | {"m0"}
            elif self.store:
                src = set().union(*R)
                self.data = R[0] if op.startswith("buffer_") else R[1]
                if "atomic" in op and "sc0" in self.mods: dst = R[0]
            elif op.startswith(("buffer_inv", "buffer_wbl2")):
                pass
            else:
                dst = R[0]; src = set().union(*R[1:])
        elif self.ds:
            if op.startswith(("ds_read", "ds_bpermute", "ds_permute", "ds_swizzle")) or "_rtn" in op:
                dst = R[0]; src = set().union(*R[1:]) if len(R) > 1 else set()
            else:
                src = set().union(*R)
        elif self.salu:
            if op.startswith(("s_cmp", "s_waitcnt", "s_barrier", "s_nop", "s_branch", "s_cbranch", "s_endpgm", "s_setprio", "s_sleep", "s_bitcmp", "s_setreg")):
                src = set().union(*R) if R else set()
            else:
                dst = R[0] if R else set(); src = set().union(*R[1:]) if len(R) > 1 else set()
                if "saveexec" in op: dst |= {"exec_lo", "exec_hi"}
        self.dst, self.src = dst, src
        self.states = 1
        if op == "s_nop": self.states = int(ops[0], 0) + 1
        self.branch = op.startswith(("s_branch", "s_cbranch"))
        self.uncond = op in ("s_branch", "s_endpgm")
        self.target = ops[0] if self.branch else None

def is_sg(r): return r[0] == "s" or r.startswith(("vcc", "exec")) or r == "m0"
def is_vg(r): return r[0] in "va" and not r.startswith("vcc")

def need(p, c):
    n = 0
    pv = {r for r in p.dst if is_vg(r)}
    ps = {r for r in p.dst if is_sg(r)}
    if p.mfma:
        full = 12 if p.passes == 8 else 8
        if c.mfma:
            if pv & c.srcAB: n = max(n, full)
            if pv & c.srcC and not (pv == c.srcC and p.passes == c.passes): n = max(n, full - 2)
            if pv & c.dst and not (pv == c.dst): n = max(n, full)
            if pv & c.dst and pv == c.dst and not (pv == c.srcC): n = max(n, 0)
        elif c.valu or c.vmem or c.ds:
            if pv & (c.src | c.dst): n = max(n, full)
        if c.valu and (p.srcC & c.dst): n = max(n, 7 if p.passes == 8 else 3)
    if p.valu:
        if c.mfma and (pv & c.src): n = max(n, 2)
        if c.dpp and c.valu and (pv & c.src): n = max(n, 2)
        if c.permlane and (pv & c.src): n = max(n, 2)
        if c.readlane and (pv & c.src): n = max(n, 1)
        if p.trans and c.valu and not c.trans and (pv & c.src): n = max(n, 1)
        if p.trans and c.valu and c.trans and (pv & c.src): n = max(n, 1)
        if ("sdwa" in p.op or "op_sel" in p.mods and not p.op.startswith("v_pk")) and c.valu and (pv & (c.src | c.dst)): n = max(n, 1)
        sg = ps - {"exec_lo", "exec_hi"}
        if c.valu and (sg & c.src): n = max(n, 4 if c.readlane or c.op.startswith("v_writelane") else 2)
        if c.vmem and (sg & c.src): n = max(n, 5)
        if ps & {"exec_lo", "exec_hi"}:
            if c.mfma or c.readlane or c.permlane or c.op.startswith("v_writelane"): n = max(n, 4)
            if c.dpp and c.valu: n = max(n, 5)
            if c.valu and (c.src & {"exec_lo", "exec_hi"}): n = max(n, 2)
        if ps and c.salu and (ps & c.src) and not c.branch: n = max(n, 1)
    if p.op.startswith("v_dot") and (c.valu or c.vmem or c.ds or c.mfma):
        if c.op == p.op:
            if pv & (regs_of(c.ops[1]) | regs_of(c.ops[2])): n = max(n, 3)
        elif pv & (c.src | c.dst): n = max(n, 3)
    if p.salu and "m0" in p.dst and c.lds_dma: n = max(n, 1)
    if p.wide_store and (p.data & c.dst):
        n = max(n, 2 if c.valu else 1)
    return n

MAXD = 13
def fix_hazards(text, verbose=False):
    total = 0
    for _ in range(200):
        lines = text.split("\n")
        ins, idx, labels = [], [], {}
        for i, l in enumerate(lines):
            s = l.split(";")[0].strip()
            if not s or s.startswith("."):
                continue
            if s.endswith(":"):
                labels[s[:-1]] = len(ins); continue
            ins.append(Ins(s)); idx.append(i)
        preds = [[] for _ in ins]
        for k, a in enumerate(ins):
            if not a.uncond and k + 1 < len(ins): preds[k + 1].append(k)
            if a.branch and a.target in labels and labels[a.target] < len(ins): preds[labels[a.target]].append(k)
        fixes = {}
        for k, c in enumerate(ins):
            if c.op == "s_nop": continue
            stack = [(p, 0) for p in preds[k]]
            seen = {}
            worst = 0
            while stack:
                p, d = stack.pop()
                if d >= MAXD or seen.get(p, 99) <= d: continue
                seen[p] = d
                n = need(ins[p], c)
                if n > d:
                    worst = max(worst, n - d)
                    if verbose: print(f"hazard: '{ins[p].code}' -> '{c.code}' need {n} have {d}")
                for q in preds[p]: stack.append((q, d + ins[p].states))
            if worst: fixes[k] = worst
        if not fixes:
            return text, total
        last = -100
        out = list(lines)
        applied = []
        for k in sorted(fixes):
            if k - last > MAXD:
                applied.append(k); last = k
        for k in reversed(applied):
            out.insert(idx[k], f"    s_nop {fixes[k]-1}")
            total += 1
        text = "\n".join(out)
    raise RuntimeError("hazard fixing did not converge")

def max_regs(text):
    v = s = a = -1
    for l in text.split("\n"):
        c = l.split(";")[0]
        for m in re.finditer(r"\b([vas])(\d+)\b|\b([vas])\[(\d+):(\d+)\]", c):
            if m.group(1):
                k, n = m.group(1), int(m.group(2))
            else:
                k, n = m.group(3), int(m.group(5))
            if k == "v": v = max(v, n)
            elif k == "s": s = max(s, n)
            else: a = max(a, n)
    return v + 1, s + 1, a + 1
```

```python
import struct, math
from asmtool import Asm, vr, ar, sr

def f32(x):
    return "0x%08x" % struct.unpack("<I", struct.pack("<f", x))[0]

S, D, H, DH = 2048, 576, 32, 18
LOG2E = math.log2(math.e)
QSCALE = LOG2E / math.sqrt(DH)
INV2PI = 1.0 / (2 * math.pi)

KA_X, KA_WQKV, KA_WO, KA_BX, KA_LRE, KA_LIM, KA_BRE, KA_BIM, KA_CRE, KA_CIM, KA_LOGDT, KA_DSKIP, KA_GW, KA_OUT, KA_DBG, KA_WS = [8 * i for i in range(16)]

Q_TS, Q_HS = 1152, 64 * 1152
KV_TS, KV_HS = 2368, 64 * 2368
WS_Q = 0
WS_KV = WS_Q + 32 * Q_HS
WS_U = WS_KV + 32 * KV_HS
NSTEP = 108
WS_AF = WS_U + 64 * 18 * 4096
WS_BF = WS_AF + 64 * NSTEP * 1024
WS_P = WS_BF + 18 * NSTEP * 1024
WS_E = WS_P + 128 * 576 * 8
WS_T = WS_E + 16 * 576 * 8
WS_G = WS_T + 10 * 576 * 8
WS_END = WS_G + 2048 * 4
WS_SIZE = 1 << 25
assert WS_END <= WS_SIZE

def srd(a, s, ka, nbytes):
    a(f"s_load_dwordx2 {sr(s,2)}, s[0:1], {ka}")
    a(f"s_mov_b32 s{s+2}, {nbytes}")
    a(f"s_mov_b32 s{s+3}, 0x20000")

def lam_base(a, lre, lim, ldt):
    a(f"v_lshlrev_b32 v{lre}, 16, v{lre}")
    a(f"v_lshlrev_b32 v{lim}, 16, v{lim}")
    a(f"v_lshlrev_b32 v{ldt}, 16, v{ldt}")
    a(f"v_mul_f32 v{ldt}, {f32(LOG2E)}, v{ldt}")
    a(f"v_exp_f32 v{ldt}, v{ldt}")
    a(f"v_cvt_pk_bf16_f32 v{ldt}, v{ldt}, v{ldt}")
    a(f"v_and_b32 v{ldt}, 0xffff0000, v{ldt}")
    a(f"v_mul_f32 v{lre}, v{ldt}, v{lre}")
    a(f"v_mul_f32 v{lim}, v{ldt}, v{lim}")
    a(f"v_mul_f32 v{lre}, {f32(LOG2E)}, v{lre}")
    a(f"v_mul_f32 v{lim}, {f32(INV2PI)}, v{lim}")

def lam_pow(a, dre, dim, ea, ph, k, t):
    ks = k if isinstance(k, str) else f32(float(k))
    a(f"v_mul_f32 v{t}, {ks}, v{ea}")
    a(f"v_mul_f32 v{dim}, {ks}, v{ph}")
    a(f"v_exp_f32 v{t}, v{t}")
    a(f"v_fract_f32 v{dim}, v{dim}")
    a(f"v_cos_f32 v{dre}, v{dim}")
    a(f"v_sin_f32 v{dim}, v{dim}")
    a(f"v_mul_f32 v{dre}, v{t}, v{dre}")
    a(f"v_mul_f32 v{dim}, v{t}, v{dim}")

def kernel_footer(name, vgpr, sgpr, accum):
    return f""".section .rodata,"a"
.p2align 6
.amdhsa_kernel {name}
  .amdhsa_next_free_vgpr {vgpr}
  .amdhsa_next_free_sgpr {sgpr}
  .amdhsa_accum_offset {accum}
  .amdhsa_group_segment_fixed_size 0
  .amdhsa_kernarg_size 128
  .amdhsa_user_sgpr_count 2
  .amdhsa_user_sgpr_kernarg_segment_ptr 1
  .amdhsa_system_sgpr_workgroup_id_x 1
.end_amdhsa_kernel
.text
"""
```

```python
from common import *

SLOT = 40960
WOFF = 16384
NST = 9
sRB, sCT, sW = 3, 4, 5
S_X, S_W, S_W2, S_WS = 8, 12, 16, 20
sT0, sT1, sT2, sT3, sT4, sT5 = 24, 25, 26, 27, 28, 29
S_A, S_B, S_C = 32, 36, 40
sLW = 44

def loader(a, typ):
    L = f"k1_{typ}_ld"
    vX, vW = 8, 12
    a(f"s_sub_u32 s{sLW}, s{sW}, 4")
    a(f"s_and_b32 s{sT0}, s{sLW}, 1")
    a(f"s_lshl_b32 s{sT0}, s{sT0}, 2")
    a(f"v_lshrrev_b32 v2, 4, v1")
    a(f"v_add_u32 v2, s{sT0}, v2")
    a(f"v_and_b32 v3, 7, v1")
    a(f"v_xor_b32 v2, v2, v3")
    a(f"v_lshlrev_b32 v2, 4, v2")
    a(f"v_lshrrev_b32 v3, 3, v1")
    a(f"s_lshl_b32 s{sT1}, s{sLW}, 3")
    a(f"v_add_u32 v3, s{sT1}, v3")
    a(f"s_movk_i32 s{sT2}, 1152")
    a(f"v_mad_u32_u24 v4, v3, s{sT2}, v2")
    a(f"s_mul_i32 s{sT3}, s{sRB}, {128*1152}")
    for i in range(4):
        a(f"s_add_u32 s{sT4}, s{sT3}, {i*32*1152}")
        a(f"v_add_u32 v{vX+i}, s{sT4}, v4")
    if typ == "b":
        a(f"s_sub_u32 s{sT3}, s{sCT}, 9")
        a(f"s_mul_i32 s{sT3}, s{sT3}, {96*1152}")
        for u in range(6):
            a(f"s_add_u32 s{sT4}, s{sT3}, {(u>>1)*32*1152}")
            a(f"v_add_u32 v{vW+u}, s{sT4}, v4")
    else:
        a(f"s_lshl_b32 s{sT3}, s{sLW}, 6")
        a(f"s_movk_i32 s{sT4}, 2731")
        a(f"s_movk_i32 s{sT5}, 3456")
        a(f"s_mul_i32 s{sT2}, s{sCT}, 384")
        for i in range(6):
            a(f"v_add_u32 v5, s{sT3}, v1")
            if i: a(f"v_add_u32 v5, {256*i}, v5")
            a(f"v_mul_u32_u24 v6, s{sT4}, v5")
            a(f"v_lshrrev_b32 v6, 16, v6")
            a(f"v_mul_u32_u24 v7, 24, v6")
            a(f"v_sub_u32 v5, v5, v7")
            a(f"v_lshlrev_b32 v7, 1, v6")
            a(f"v_and_b32 v7, 4, v7")
            a(f"v_xor_b32 v5, v5, v7")
            a(f"v_lshlrev_b32 v5, 4, v5")
            a(f"v_mad_u32_u24 v5, v6, s{sT5}, v5")
            a(f"v_add_u32 v{vW+i}, s{sT2}, v5")
    a(f"s_lshl_b32 s{sLW}, s{sLW}, 10")
    a("s_waitcnt lgkmcnt(0)")
    def issue(t):
        slot = (t % 4) * SLOT
        a(f"s_movk_i32 s{sT0}, {t*128}")
        a(f"s_mov_b32 s{sT1}, {t*128 if typ == 'b' else t*64*3456}")
        for i in range(4):
            a(f"s_add_u32 m0, s{sLW}, {slot + i*4096}")
            a(f"buffer_load_dwordx4 v{vX+i}, {sr(S_X,4)}, s{sT0} offen lds")
        for i in range(6):
            a(f"s_add_u32 m0, s{sLW}, {slot + WOFF + i*4096}")
            d = S_W2 if (typ == "b" and i & 1) else S_W
            a(f"buffer_load_dwordx4 v{vW+i}, {sr(d,4)}, s{sT1} offen lds")
    for t in range(4): issue(t)
    issued = 3
    for t in range(NST):
        a(f"s_waitcnt vmcnt({10*(issued - t)})")
        a("s_barrier")
        if t >= 1 and t + 3 < NST:
            issue(t + 3); issued = t + 3
    a("s_endpgm")

vXA = 2
vWA = 6
vEA = 10
vF = [16, 44]
vAC = 72
vL = 168
vPK = 186

def compute_main(a, typ):
    nread = 13 if typ == "w" else 7
    def reads(q):
        s = q % 4
        F = vF[q % 2]
        out = [f"ds_read_b128 {vr(F,4)}, v{vXA+s}"]
        for u in range(6):
            if typ == "w":
                for j2 in range(2):
                    out.append(f"ds_read_b64_tr_b16 {vr(F+4+4*u+2*j2,2)}, v{vWA+(u&1)} offset:{(16*s+4*j2)*384+u*64}")
            else:
                out.append(f"ds_read_b128 {vr(F+4+4*u,4)}, v{vWA+s} offset:{u*4096}")
        return out
    def advance(t):
        d = SLOT if t % 4 else -3 * SLOT
        regs = [vXA + i for i in range(4)] + [vWA + i for i in range(4 if typ == "b" else 2)]
        return [f"v_add_u32 v{r}, {d & 0xffffffff}, v{r}" for r in regs]
    a("s_barrier")
    for l in reads(0): a(l)
    for q in range(4 * NST):
        F = vF[q % 2]
        a("s_waitcnt lgkmcnt(0)")
        nxt = reads(q + 1) if q + 1 < 4 * NST else []
        newstage = (q + 1) % 4 == 0 and nxt
        per = [0, 3, 3, 3, 2, 2] if typ == "w" else [0, 2, 2, 1, 1, 1]
        if not newstage: per = [3, 2, 2, 2, 2, 2] if typ == "w" else [2, 1, 1, 1, 1, 1]
        for u in range(6):
            c = "0" if q == 0 else vr(vAC + 16 * u, 16)
            a(f"v_mfma_f32_32x32x16_bf16 {vr(vAC+16*u,16)}, {vr(F,4)}, {vr(F+4+4*u,4)}, {c}")
            if u == 0 and newstage:
                a("s_barrier")
                for l in advance((q + 1) // 4): a(l)
            k = per[u]
            for l in nxt[:k]: a(l)
            nxt = nxt[k:]
        assert not nxt

def compute_w(a):
    a("v_and_b32 v12, 31, v1")
    a("v_lshrrev_b32 v13, 5, v1")
    a(f"s_lshl_b32 s{sT0}, s{sW}, 12")
    a("v_lshrrev_b32 v14, 1, v12")
    a("v_and_b32 v14, 7, v14")
    a("v_xor_b32 v14, v14, v13")
    a(f"v_lshl_add_u32 v15, v12, 7, s{sT0}")
    for s in range(4):
        a(f"v_xor_b32 v16, {2*s}, v14")
        a(f"v_lshl_add_u32 v{vXA+s}, v16, 4, v15")
    a("v_bfe_u32 v16, v1, 2, 2")
    a("v_lshl_add_u32 v17, v13, 3, v16")
    a(f"v_mul_u32_u24 v17, 384, v17")
    a("v_bfe_u32 v18, v1, 4, 1")
    a("v_lshl_add_u32 v17, v18, 5, v17")
    a("v_and_b32 v18, 3, v1")
    a("v_lshl_add_u32 v17, v18, 3, v17")
    a(f"v_add_u32 v17, {WOFF}, v17")
    a("v_bfe_u32 v18, v1, 3, 1")
    a("v_lshlrev_b32 v18, 6, v18")
    a(f"v_add_u32 v{vWA}, v17, v18")
    a(f"v_sub_u32 v{vWA+1}, v17, v18")
    a(f"s_mul_i32 s{sT0}, s{sCT}, 11")
    a(f"s_lshr_b32 s{sT0}, s{sT0}, 5")
    a(f"s_mul_i32 s{sT1}, s{sT0}, 3")
    a(f"s_sub_u32 s{sT1}, s{sCT}, s{sT1}")
    sHS, sCS, sB0, sB1, sKind, sJ, sTT = 46, 47, 48, 49, 50, 51, 52
    a(f"s_mov_b32 s{sKind}, s{sT0}")
    a(f"s_mov_b32 s{sJ}, s{sT1}")
    a(f"s_lshl_b32 s{sTT}, s{sRB}, 2")
    a(f"s_add_u32 s{sTT}, s{sTT}, s{sW}")
    a(f"s_cmp_eq_u32 s{sKind}, 0")
    a(f"s_cselect_b32 s{sHS}, {Q_HS}, {KV_HS}") if False else None
    a(f"s_mov_b32 s{sT2}, {Q_HS}")
    a(f"s_mov_b32 s{sT3}, {KV_HS}")
    a(f"s_cselect_b32 s{sHS}, s{sT2}, s{sT3}")
    a(f"s_movk_i32 s{sT2}, {Q_TS}")
    a(f"s_movk_i32 s{sT3}, {KV_TS}")
    a(f"s_cselect_b32 s{sT4}, s{sT2}, s{sT3}")
    a(f"s_mov_b32 s{sT2}, {WS_Q}")
    a(f"s_mov_b32 s{sT3}, {WS_KV}")
    a(f"s_cselect_b32 s{sB0}, s{sT2}, s{sT3}")
    a(f"s_mul_i32 s{sT4}, s{sT4}, s{sTT}")
    a(f"s_add_u32 s{sB0}, s{sB0}, s{sT4}")
    a(f"s_cmp_eq_u32 s{sKind}, 2")
    a(f"s_movk_i32 s{sT2}, 304")
    a(f"s_movk_i32 s{sT3}, 288")
    a(f"s_cselect_b32 s{sCS}, s{sT2}, s{sT3}")
    a(f"s_movk_i32 s{sT2}, 1152")
    a(f"s_cselect_b32 s{sT2}, s{sT2}, 0")
    a(f"s_add_u32 s{sB0}, s{sB0}, s{sT2}")
    a(f"s_lshl_b32 s{sT2}, s{sCS}, 1")
    a(f"s_add_u32 s{sB1}, s{sB0}, s{sT2}")
    a(f"s_mul_i32 s{sT2}, s{sJ}, 192")
    a(f"s_movk_i32 s{sT3}, 3641")
    a(f"v_mul_u32_u24 v18, s{sCS}, v13")
    for u in range(6):
        a(f"s_add_u32 s{sT4}, s{sT2}, {32*u}")
        a(f"v_add_u32 v16, s{sT4}, v12")
        a(f"v_mul_u32_u24 v17, s{sT3}, v16")
        a(f"v_lshrrev_b32 v17, 16, v17")
        a(f"v_mul_u32_u24 v19, 18, v17")
        a(f"v_sub_u32 v16, v16, v19")
        a(f"v_mul_lo_u32 v17, v17, s{sHS}")
        a(f"v_lshl_add_u32 v16, v16, 4, v18")
        a(f"v_add_u32 v{vEA+u}, v16, v17") if u < 2 else a(f"v_add_u32 v{vL+u}, v16, v17")
    for u in range(2, 6):
        a(f"v_mov_b32 v{vEA+u}, v{vL+u}")
    a("s_waitcnt lgkmcnt(0)")
    compute_main(a, "w")
    a(f"s_cmp_lg_u32 s{sKind}, 0")
    a("s_cbranch_scc1 k1_w_noscale")
    a(f"s_mov_b32 s{sT0}, {f32(QSCALE)}")
    for r in range(96):
        a(f"v_mul_f32 v{vAC+r}, s{sT0}, v{vAC+r}")
    a.label("k1_w_noscale")
    for u in range(6):
        P = vPK + 8 * u
        for j in range(8):
            a(f"v_cvt_pk_bf16_f32 v{P+j}, v{vAC+16*u+2*j}, v{vAC+16*u+2*j+1}")
        a(f"buffer_store_dwordx4 {vr(P,4)}, v{vEA+u}, {sr(S_WS,4)}, s{sB0} offen")
        a(f"buffer_store_dwordx4 {vr(P+4,4)}, v{vEA+u}, {sr(S_WS,4)}, s{sB1} offen")
    a(f"s_cmp_lg_u32 s{sKind}, 2")
    a("s_cbranch_scc1 k1_end")
    a(f"s_mul_i32 s{sT0}, s{sJ}, 11")
    a(f"s_min_u32 s{sT1}, s{sJ}, 1")
    a(f"s_sub_u32 s{sT0}, s{sT0}, s{sT1}")
    a("v_lshrrev_b32 v2, 2, v1")
    a("v_cmp_gt_u32 vcc, 11, v2")
    a(f"v_add_u32 v2, s{sT0}, v2")
    a(f"v_mul_lo_u32 v2, v2, s{sHS}")
    a("v_and_b32 v3, 3, v1")
    a("v_mul_u32_u24 v3, 304, v3")
    a("v_add3_u32 v2, v2, v3, 0")
    for i in range(4):
        a(f"v_mov_b32 v{4+i}, 0x3f803f80")
    a("s_and_saveexec_b64 s[30:31], vcc")
    a(f"buffer_store_dwordx4 v[4:7], v2, {sr(S_WS,4)}, s{sB0} offen offset:288")
    a("s_endpgm")

def compute_b(a):
    a("v_and_b32 v12, 31, v1")
    a("v_lshrrev_b32 v13, 5, v1")
    a(f"s_sub_u32 s{sT0}, s{sCT}, 9")
    sC3, sTT = 46, 47
    a(f"s_mul_i32 s{sC3}, s{sT0}, 3")
    a(f"s_mul_i32 s{sT0}, s{sT0}, 192")
    a(f"v_lshl_add_u32 v14, v12, 1, s{sT0}")
    a("s_waitcnt lgkmcnt(0)")
    for g in range(3):
        a(f"buffer_load_ushort v{vPK+3*g}, v14, {sr(S_A,4)}, 0 offen offset:{64*g}")
        a(f"buffer_load_ushort v{vPK+3*g+1}, v14, {sr(S_B,4)}, 0 offen offset:{64*g}")
        a(f"buffer_load_ushort v{vPK+3*g+2}, v14, {sr(S_C,4)}, 0 offen offset:{64*g}")
    a("v_bfe_u32 v14, v12, 2, 1")
    a("v_lshlrev_b32 v14, 4, v14")
    a("v_lshrrev_b32 v15, 3, v12")
    a("v_lshl_add_u32 v14, v15, 2, v14")
    a("v_and_b32 v15, 3, v12")
    a("v_add_u32 v14, v14, v15")
    a(f"s_lshl_b32 s{sT0}, s{sW}, 12")
    a(f"v_lshl_add_u32 v15, v14, 7, s{sT0}")
    a("v_bfe_u32 v14, v14, 1, 3")
    a("v_xor_b32 v14, v14, v13")
    for s in range(4):
        a(f"v_xor_b32 v16, {2*s}, v14")
        a(f"v_lshl_add_u32 v{vXA+s}, v16, 4, v15")
    a("v_bfe_u32 v14, v12, 1, 3")
    a("v_xor_b32 v14, v14, v13")
    a("v_lshlrev_b32 v15, 7, v12")
    a(f"v_add_u32 v15, {WOFF}, v15")
    for s in range(4):
        a(f"v_xor_b32 v16, {2*s}, v14")
        a(f"v_lshl_add_u32 v{vWA+s}, v16, 4, v15")
    a(f"s_lshl_b32 s{sTT}, s{sRB}, 2")
    a(f"s_add_u32 s{sTT}, s{sTT}, s{sW}")
    a("s_waitcnt vmcnt(0)")
    for g in range(3):
        lre, lim, ldt = vPK + 3 * g, vPK + 3 * g + 1, vPK + 3 * g + 2
        lam_base(a, lre, lim, ldt)
        B = vL + 6 * g
        lam_pow(a, B, B + 1, lre, lim, 1.0, ldt)
        a(f"v_sub_f32 v{B+2}, 0, v{B+1}")
        lam_pow(a, B + 3, B + 4, lre, lim, 16.0, ldt)
        a(f"v_sub_f32 v{B+5}, 0, v{B+4}")
    a(f"v_mov_b32 v{vEA}, v12")
    a(f"v_mov_b32 v{vEA+1}, v13")
    compute_main(a, "b")
    vN, vHH = vEA, vEA + 1
    a(f"s_mul_i32 s{sT0}, s{sTT}, 18")
    a(f"s_add_u32 s{sT0}, s{sT0}, s{sC3}")
    a(f"s_lshl_b32 s{sT0}, s{sT0}, 12")
    a(f"s_add_u32 s{sT0}, s{sT0}, {WS_U}")
    a("v_lshlrev_b32 v2, 4, v1")
    for g in range(3):
        R, I = vAC + 32 * g, vAC + 32 * g + 16
        P = vPK + 16 * g
        for r in range(16):
            a(f"v_cvt_pk_bf16_f32 v{P+r}, v{R+r}, v{I+r}")
            if r % 4 == 3:
                a(f"buffer_store_dwordx4 {vr(P+r-3,4)}, v2, {sr(S_WS,4)}, s{sT0} offen offset:{(r//4)*1024}")
        if g < 2: a(f"s_add_u32 s{sT0}, s{sT0}, 4096")
    for r in range(1, 16):
        for g in range(3):
            R, I, B = vAC + 32 * g, vAC + 32 * g + 16, vL + 6 * g
            a(f"v_fmac_f32 v{R+r}, v{B}, v{R+r-1}")
            a(f"v_fmac_f32 v{I+r}, v{B}, v{I+r-1}")
        for g in range(3):
            R, I, B = vAC + 32 * g, vAC + 32 * g + 16, vL + 6 * g
            a(f"v_fmac_f32 v{R+r}, v{B+2}, v{I+r-1}")
            a(f"v_fmac_f32 v{I+r}, v{B+1}, v{R+r-1}")
    EX = SLOT
    a(f"v_lshlrev_b32 v3, 3, v{vN}")
    a(f"s_mul_i32 s{sT1}, s{sW}, {2*768}")
    a(f"v_mul_u32_u24 v4, 768, v{vHH}")
    a(f"v_add3_u32 v4, v4, v3, s{sT1}")
    for g in range(3):
        R, I = vAC + 32 * g, vAC + 32 * g + 16
        a(f"v_mov_b32 v{16+2*g}, v{R+15}")
        a(f"v_mov_b32 v{17+2*g}, v{I+15}")
        a(f"ds_write_b64 v4, {vr(16+2*g,2)} offset:{EX + g*256}")
    a("s_waitcnt lgkmcnt(0)")
    a("s_barrier")
    ER = 24
    for s in range(7):
        for g in range(3):
            a(f"ds_read_b64 {vr(ER+6*s+2*g,2)}, v3 offset:{EX + s*768 + g*256}")
    PR = vAC
    for g in range(3):
        a(f"v_mov_b32 v{PR+2*g}, 0")
        a(f"v_mov_b32 v{PR+2*g+1}, 0")
    a(f"s_lshl_b32 s{sT1}, s{sW}, 1")
    a(f"v_add_u32 v5, s{sT1}, v{vHH}")
    a("s_waitcnt lgkmcnt(0)")
    def horner(er, dst, tmp):
        for g in range(3):
            B = vL + 6 * g
            a(f"v_fma_f32 v{tmp+2*g}, v{B+3}, v{PR+2*g}, v{er+2*g}")
            a(f"v_fma_f32 v{tmp+2*g+1}, v{B+3}, v{PR+2*g+1}, v{er+2*g+1}")
        for g in range(3):
            B = vL + 6 * g
            a(f"v_fmac_f32 v{tmp+2*g}, v{B+5}, v{PR+2*g+1}")
            a(f"v_fmac_f32 v{tmp+2*g+1}, v{B+4}, v{PR+2*g}")
        if dst != tmp:
            for i in range(6):
                a(f"v_mov_b32 v{dst+i}, v{tmp+i}")
    for s in range(7):
        a(f"v_cmpx_lt_u32 vcc, {s}, v5")
        a("s_cbranch_execz k1_b_pdone")
        horner(ER + 6 * s, PR, PR + 8)
    a.label("k1_b_pdone")
    a("s_mov_b64 exec, -1")
    a(f"s_mul_i32 s{sT0}, s{sTT}, {2*576*8}")
    a(f"s_lshl_b32 s{sT1}, s{sC3}, 8")
    a(f"s_add_u32 s{sT0}, s{sT0}, s{sT1}")
    a(f"s_add_u32 s{sT0}, s{sT0}, {WS_P}")
    a(f"v_mul_u32_u24 v4, {576*8}, v{vHH}")
    a("v_add_u32 v4, v4, v3")
    for g in range(3):
        a(f"buffer_store_dwordx2 {vr(PR+2*g,2)}, v4, {sr(S_WS,4)}, s{sT0} offen offset:{g*256}")
    a(f"s_cmp_lg_u32 s{sW}, 3")
    a("s_cbranch_scc1 k1_end")
    horner(16, PR + 8, PR + 8)
    a(f"s_mul_i32 s{sT0}, s{sRB}, {576*8}")
    a(f"s_add_u32 s{sT0}, s{sT0}, s{sT1}")
    a(f"s_add_u32 s{sT0}, s{sT0}, {WS_E}")
    a("s_mov_b32 exec_lo, 0")
    for g in range(3):
        a(f"buffer_store_dwordx2 {vr(PR+8+2*g,2)}, v3, {sr(S_WS,4)}, s{sT0} offen offset:{g*256}")
    a("s_endpgm")

def aux(a):
    S_CRE, S_CIM, S_WO, S_GW = 48, 52, 56, 60
    sJ = 64
    srd(a, S_CRE, KA_CRE, 576 * 576 * 2)
    srd(a, S_CIM, KA_CIM, 576 * 576 * 2)
    srd(a, S_WO, KA_WO, 576 * 576 * 2)
    srd(a, S_GW, KA_GW, 576 * 2)
    COEF = 576 * 128
    a("v_lshlrev_b32 v2, 1, v0")
    a("s_waitcnt lgkmcnt(0)")
    for rnd in range(2):
        for i, d in enumerate((S_A, S_B, S_C)):
            a(f"buffer_load_ushort v{10+3*rnd+i}, v2, {sr(d,4)}, 0 offen offset:{1024*rnd}")
    a(f"s_cmp_ge_u32 s{sRB}, 9")
    a("s_cbranch_scc1 k1_aux_nowo")
    a("v_lshrrev_b32 v3, 3, v1")
    a(f"s_lshl_b32 s{sT0}, s{sW}, 3")
    a(f"v_add_u32 v3, s{sT0}, v3")
    a("v_mul_u32_u24 v3, 1152, v3")
    a("v_and_b32 v4, 7, v1")
    a("v_lshl_add_u32 v3, v4, 4, v3")
    a(f"s_lshl_b32 s{sT1}, s{sRB}, 7")
    a(f"s_lshl_b32 s{sT2}, s{sW}, 10")
    for i in range(9):
        a(f"s_add_u32 m0, s{sT2}, {i*8192}")
        a(f"buffer_load_dwordx4 v3, {sr(S_WO,4)}, s{sT1} offen lds")
        if i < 8: a(f"s_add_u32 s{sT1}, s{sT1}, {64*1152}")
    a.label("k1_aux_nowo")
    GX, GW_ = 100, 60
    a("v_lshrrev_b32 v3, 3, v1")
    a(f"s_lshl_b32 s{sT0}, s{sRB}, 7")
    a(f"s_lshl_b32 s{sT1}, s{sW}, 4")
    a(f"s_add_u32 s{sT0}, s{sT0}, s{sT1}")
    a(f"v_add_u32 v5, s{sT0}, v3")
    a("v_and_b32 v4, 7, v1")
    a("v_lshlrev_b32 v4, 4, v4")
    a("v_mul_u32_u24 v3, 1152, v5")
    a("v_add_u32 v3, v3, v4")
    a(f"s_movk_i32 s{sT2}, {8*1152}")
    for i in range(9):
        a(f"buffer_load_dwordx4 {vr(GW_+4*i,4)}, v4, {sr(S_GW,4)}, 0 offen offset:{128*i}")
    for ps in range(2):
        for i in range(9):
            a(f"buffer_load_dwordx4 {vr(GX+36*ps+4*i,4)}, v3, {sr(S_X,4)}, {'0' if ps == 0 else 's%d' % sT2} offen offset:{128*i}")
    CR, CI = 20, 36
    def cjob_addr():
        a(f"s_mul_i32 s{sT0}, s{sJ}, 7282")
        a(f"s_lshr_b32 s{sT0}, s{sT0}, 16")
        a(f"s_mul_i32 s{sT1}, s{sT0}, 9")
        a(f"s_sub_u32 s{sT1}, s{sJ}, s{sT1}")
        a(f"s_mul_i32 s{sT2}, s{sT0}, {32*1152}")
        a(f"s_lshl_b32 s{sT3}, s{sT1}, 7")
        a(f"s_add_u32 s{sT2}, s{sT2}, s{sT3}")
        a("v_and_b32 v6, 31, v1")
        a("v_mul_u32_u24 v6, 1152, v6")
        a("v_lshrrev_b32 v7, 5, v1")
        a("v_lshl_add_u32 v6, v7, 6, v6")
        for q in range(4):
            a(f"buffer_load_dwordx4 {vr(CR+4*q,4)}, v6, {sr(S_CRE,4)}, s{sT2} offen offset:{16*q}")
            a(f"buffer_load_dwordx4 {vr(CI+4*q,4)}, v6, {sr(S_CIM,4)}, s{sT2} offen offset:{16*q}")
    a(f"s_lshl_b32 s{sJ}, s{sRB}, 3")
    a(f"s_add_u32 s{sJ}, s{sJ}, s{sW}")
    cjob_addr()
    a("s_waitcnt vmcnt(35)")
    sK = 65
    a(f"s_lshl_b32 s{sT0}, s{sRB}, 4")
    a(f"s_cmp_eq_u32 s{sRB}, 8")
    a(f"s_cselect_b32 s{sT0}, 1, s{sT0}")
    a(f"s_cmp_eq_u32 s{sRB}, 9")
    a(f"s_cselect_b32 s{sT0}, 0x80, s{sT0}")
    a(f"v_cvt_f32_u32 v8, s{sT0}")
    a(f"v_readfirstlane_b32 s{sK}, v8")
    a(f"s_mul_i32 s{sT4}, s{sRB}, {576*8}")
    a(f"s_add_u32 s{sT4}, s{sT4}, {WS_T}")
    a("v_lshlrev_b32 v9, 3, v0")
    for rnd in range(2):
        lre, lim, ldt = 10 + 3 * rnd, 11 + 3 * rnd, 12 + 3 * rnd
        if rnd == 1:
            a(f"s_cmp_lg_u32 s{sW}, 0")
            a("s_cbranch_scc1 k1_aux_coefdone")
        a(f"v_lshlrev_b32 v16, 16, v{lre}")
        a(f"v_lshlrev_b32 v17, 16, v{lim}")
        lam_base(a, lre, lim, ldt)
        lam_pow(a, 18, 19, lre, lim, 1.0, ldt)
        a("v_add_f32 v18, -1.0, v18")
        a("v_mul_f32 v2, v16, v16")
        a("v_fmac_f32 v2, v17, v17")
        a("v_rcp_f32 v2, v2")
        a("v_mul_f32 v52, v18, v16")
        a("v_fmac_f32 v52, v19, v17")
        a("v_mul_f32 v53, v19, v16")
        a("v_fma_f32 v53, -v18, v17, v53")
        a("v_add_f32 v2, v2, v2")
        a("v_mul_f32 v52, v52, v2")
        a("v_mul_f32 v53, v53, v2")
        a(f"ds_write_b64 v9, v[52:53] offset:{COEF - 65536 + 4096*rnd}" if False else "")
        a(f"v_add_u32 v54, {COEF + 4096*rnd}, v9")
        a("ds_write_b64 v54, v[52:53]")
        a(f"s_cmp_ge_u32 s{sRB}, 10")
        a(f"s_cbranch_scc1 k1_aux_notab{rnd}")
        lam_pow(a, 56, 57, lre, lim, f"s{sK}", ldt)
        if rnd == 1: a(f"s_add_u32 s{sT4}, s{sT4}, 4096")
        a(f"buffer_store_dwordx2 v[56:57], v9, {sr(S_WS,4)}, s{sT4} offen")
        a.label(f"k1_aux_notab{rnd}")
    a.label("k1_aux_coefdone")
    a("s_waitcnt vmcnt(0)")
    for ps in range(2):
        acc = 56 + ps
        a(f"v_mov_b32 v{acc}, 0")
        for i in range(36):
            a(f"v_dot2_f32_bf16 v{acc}, v{GX+36*ps+i}, v{GW_+i}, v{acc}")
    for ps in range(2):
        acc = 56 + ps
        a(f"v_add_f32_dpp v{acc}, v{acc}, v{acc} quad_perm:[1,0,3,2] row_mask:0xf bank_mask:0xf")
        a(f"v_add_f32_dpp v{acc}, v{acc}, v{acc} quad_perm:[2,3,0,1] row_mask:0xf bank_mask:0xf")
        a(f"v_add_f32_dpp v{acc}, v{acc}, v{acc} row_half_mirror row_mask:0xf bank_mask:0xf")
        a(f"v_mul_f32 v{acc}, {f32(-LOG2E)}, v{acc}")
        a(f"v_exp_f32 v{acc}, v{acc}")
        a(f"v_add_f32 v{acc}, 1.0, v{acc}")
        a(f"v_rcp_f32 v{acc}, v{acc}")
    a("v_lshlrev_b32 v5, 2, v5")
    a(f"s_mov_b32 s{sT0}, {WS_G}")
    a("s_mov_b32 exec_lo, 0x01010101")
    a("s_mov_b32 exec_hi, 0x01010101")
    a(f"buffer_store_dword v56, v5, {sr(S_WS,4)}, s{sT0} offen")
    a(f"buffer_store_dword v57, v5, {sr(S_WS,4)}, s{sT0} offen offset:32")
    a("s_mov_b64 exec, -1")
    a("s_waitcnt lgkmcnt(0)")
    a("s_barrier")
    a.label("k1_aux_cjob")
    a(f"s_mul_i32 s{sT0}, s{sJ}, 7282")
    a(f"s_lshr_b32 s{sT0}, s{sT0}, 16")
    a(f"s_mul_i32 s{sT1}, s{sT0}, 9")
    a(f"s_sub_u32 s{sT1}, s{sJ}, s{sT1}")
    a("v_lshrrev_b32 v7, 5, v1")
    a(f"s_lshl_b32 s{sT2}, s{sT1}, 9")
    a(f"s_add_u32 s{sT2}, s{sT2}, {COEF}")
    a(f"v_lshl_add_u32 v7, v7, 8, s{sT2}")
    CF = 60
    for i in range(16):
        a(f"ds_read_b128 {vr(CF+4*i,4)}, v7 offset:{16*i}")
    XO, YO = 128, 144
    T = 160
    a("s_waitcnt vmcnt(0) lgkmcnt(0)")
    for q in range(4):
        for eo in range(2):
            for dw in range(2):
                src = 2 * eo + dw
                e0 = 8 * q + 2 * src
                a(f"v_lshlrev_b32 v{T}, 16, v{CR+4*q+src}")
                a(f"v_and_b32 v{T+1}, 0xffff0000, v{CR+4*q+src}")
                a(f"v_lshlrev_b32 v{T+2}, 16, v{CI+4*q+src}")
                a(f"v_and_b32 v{T+3}, 0xffff0000, v{CI+4*q+src}")
                for e in range(2):
                    cr, ci = CF + 2 * (e0 + e), CF + 2 * (e0 + e) + 1
                    a(f"v_mul_f32 v{T+4+e}, v{cr}, v{T+e}")
                    a(f"v_fma_f32 v{T+4+e}, -v{ci}, v{T+2+e}, v{T+4+e}")
                    a(f"v_mul_f32 v{T+6+e}, v{ci}, v{T+e}")
                    a(f"v_fma_f32 v{T+6+e}, -v{cr}, v{T+2+e}, -v{T+6+e}")
                base = YO if eo else XO
                m, pos = q >> 1, 2 * (q & 1) + dw
                a(f"v_cvt_pk_bf16_f32 v{base+0*8+4*m+pos}, v{T+4}, v{T+5}")
                a(f"v_cvt_pk_bf16_f32 v{base+1*8+4*m+pos}, v{T+6}, v{T+7}")
    for i in range(16):
        a(f"v_permlane32_swap_b32 v{XO+i}, v{YO+i}")
    a(f"s_mul_i32 s{sT2}, s{sT0}, {NSTEP}")
    a(f"s_lshl_b32 s{sT3}, s{sT1}, 3")
    a(f"s_add_u32 s{sT2}, s{sT2}, s{sT3}")
    a(f"s_add_u32 s{sT2}, s{sT2}, 36")
    a(f"s_lshl_b32 s{sT2}, s{sT2}, 10")
    a(f"s_add_u32 s{sT2}, s{sT2}, {WS_BF}")
    a(f"s_add_u32 s{sT3}, s{sT2}, 4096")
    a("v_lshlrev_b32 v6, 4, v1")
    for i in range(4):
        a(f"buffer_store_dwordx4 {vr(XO+4*i,4)}, v6, {sr(S_WS,4)}, s{sT2} offen offset:{1024*i}")
        a(f"buffer_store_dwordx4 {vr(YO+4*i,4)}, v6, {sr(S_WS,4)}, s{sT3} offen offset:{1024*i}")
    a(f"s_cmp_lt_u32 s{sRB}, 9")
    a("s_cbranch_scc1 k1_aux_wo")
    a(f"s_cmp_ge_u32 s{sJ}, 128")
    a("s_cbranch_scc1 k1_end")
    a(f"s_add_u32 s{sJ}, s{sJ}, {128 - 72}")
    a(f"s_cmp_ge_u32 s{sJ}, 162")
    a("s_cbranch_scc1 k1_end")
    cjob_addr()
    a("s_branch k1_aux_cjob")
    a.label("k1_aux_wo")
    a("v_bfe_u32 v2, v1, 2, 2")
    a("v_lshrrev_b32 v3, 5, v1")
    a("v_bfe_u32 v4, v1, 4, 1")
    a("v_lshlrev_b32 v4, 5, v4")
    a("v_and_b32 v5, 3, v1")
    a("v_lshl_add_u32 v4, v5, 3, v4")
    a("v_lshl_add_u32 v5, v3, 2, v2")
    a("v_lshl_add_u32 v5, v5, 7, v4")
    a(f"s_mul_i32 s{sT0}, s{sW}, {4*18*128}")
    a(f"v_add_u32 v5, s{sT0}, v5")
    a("v_lshrrev_b32 v6, 1, v2")
    a("v_lshl_add_u32 v6, v3, 2, v6")
    a("v_mul_u32_u24 v6, 18, v6")
    a("v_and_b32 v7, 1, v2")
    a("v_add3_u32 v6, v6, v7, 16")
    a("v_lshl_add_u32 v6, v6, 7, v4")
    a(f"s_and_b32 s{sT1}, s{sW}, 3")
    a(f"s_lshr_b32 s{sT2}, s{sW}, 2")
    a(f"s_mul_i32 s{sT0}, s{sT1}, {8*18*128}")
    a(f"s_lshl_b32 s{sT3}, s{sT2}, 6")
    a(f"s_add_u32 s{sT0}, s{sT0}, s{sT3}")
    a(f"v_add_u32 v6, s{sT0}, v6")
    FR = 20
    for i in range(8):
        hd, ntl = i & 3, i >> 2
        off = hd * 18 * 128 + ntl * 64
        a(f"ds_read_b64_tr_b16 {vr(FR+4*i,2)}, v5 offset:{off}")
        a(f"ds_read_b64_tr_b16 {vr(FR+4*i+2,2)}, v5 offset:{off + 8*128}")
    a(f"ds_read_b64_tr_b16 {vr(FR+32,2)}, v6")
    a(f"ds_read_b64_tr_b16 {vr(FR+34,2)}, v6 offset:{36*128}")
    a("v_lshlrev_b32 v7, 4, v1")
    a(f"s_mul_i32 s{sT0}, s{sRB}, {2*NSTEP*1024}")
    a(f"s_add_u32 s{sT0}, s{sT0}, {WS_BF}")
    a(f"s_lshl_b32 s{sT3}, s{sW}, 12")
    a(f"s_add_u32 s{sT3}, s{sT3}, s{sT0}")
    a(f"s_add_u32 s{sT4}, s{sT3}, {NSTEP*1024}")
    a(f"s_mul_i32 s{sT2}, s{sT2}, {NSTEP*1024}")
    a(f"s_add_u32 s{sT0}, s{sT0}, s{sT2}")
    a(f"s_lshl_b32 s{sT1}, s{sT1}, 10")
    a(f"s_add_u32 s{sT0}, s{sT0}, s{sT1}")
    a(f"s_add_u32 s{sT0}, s{sT0}, {32*1024}")
    a("s_waitcnt lgkmcnt(0)")
    for i in range(8):
        a(f"buffer_store_dwordx4 {vr(FR+4*i,4)}, v7, {sr(S_WS,4)}, s{sT3 if i < 4 else sT4} offen offset:{1024*(i&3)}")
    a(f"buffer_store_dwordx4 {vr(FR+32,4)}, v7, {sr(S_WS,4)}, s{sT0} offen")
    a("s_endpgm")

def gen_k1():
    a = Asm()
    a("s_cmp_ge_u32 s2, 256")
    a("s_cbranch_scc1 k1_end")
    srd(a, S_X, KA_X, S * D * 2)
    srd(a, S_WS, KA_WS, WS_SIZE)
    srd(a, S_A, KA_LRE, D * 2)
    srd(a, S_B, KA_LIM, D * 2)
    srd(a, S_C, KA_LOGDT, D * 2)
    a("v_lshrrev_b32 v2, 6, v0")
    a("v_and_b32 v1, 63, v0")
    a(f"v_readfirstlane_b32 s{sW}, v2")
    a(f"s_and_b32 s{sT0}, s2, 3")
    a(f"s_bfe_u32 s{sT1}, s2, 0x20003")
    a(f"s_lshl_b32 s{sRB}, s{sT0}, 2")
    a(f"s_add_u32 s{sRB}, s{sRB}, s{sT1}")
    a(f"s_bfe_u32 s{sT0}, s2, 0x10002")
    a(f"s_lshr_b32 s{sT1}, s2, 5")
    a(f"s_lshl_b32 s{sCT}, s{sT0}, 3")
    a(f"s_add_u32 s{sCT}, s{sCT}, s{sT1}")
    a(f"s_cmp_eq_u32 s{sCT}, 15")
    a("s_cbranch_scc1 k1_aux")
    a(f"s_cmp_ge_u32 s{sCT}, 9")
    a("s_cbranch_scc1 k1_b")
    srd(a, S_W, KA_WQKV, D * 3 * D * 2)
    a(f"s_cmp_ge_u32 s{sW}, 4")
    a("s_cbranch_scc1 k1_w_ld")
    compute_w(a)
    a.label("k1_w_ld")
    loader(a, "w")
    a.label("k1_b")
    srd(a, S_W, KA_BRE, D * D * 2)
    srd(a, S_W2, KA_BIM, D * D * 2)
    a(f"s_cmp_ge_u32 s{sW}, 4")
    a("s_cbranch_scc1 k1_b_ld")
    compute_b(a)
    a.label("k1_b_ld")
    loader(a, "b")
    a.label("k1_aux")
    aux(a)
    a.label("k1_end")
    a("s_endpgm")
    return a
```

```python
from common import *

S_WS = 8
sHead, sQB, sW, sUnit, sTT, sCG, sB = 3, 4, 5, 6, 12, 13, 14
sT0, sT1, sT2, sT3, sT4 = 16, 17, 18, 19, 20
sIt, sPass = 21, 22
LQ = 64 * KV_TS
K2_LDS = LQ + 9 * 1024
U = 8
vLane16, vG, vKA, vVA = 2, 3, 4, 5
vQ, vQr = 8, 12
vK = [14, 20]
vV = [28, 36]
vP = 44
vS = [52, 68]
vO = 84
vNM = 100
sU, sP_, sLam, sL128, sL16, sG1, sE, sH, sBd, sA, sD = 8, 24, 26, 28, 30, 122, 32, 64, 96, 104, 32

def pk_step(a, dst, lam, h, u):
    a(f"v_pk_fma_f32 {vr(dst,2)}, {vr(lam,2)}, {vr(h,2)}, {vr(u,2)} op_sel:[0,0,0] op_sel_hi:[0,1,1]")
    a(f"v_pk_fma_f32 {vr(dst,2)}, {vr(lam,2)}, {vr(h,2)}, {vr(dst,2)} op_sel:[1,1,0] op_sel_hi:[1,0,1] neg_lo:[1,0,0]")

def scan_loads(a):
    a(f"s_mul_i32 s{sTT}, s{sUnit}, 3641")
    a(f"s_lshr_b32 s{sTT}, s{sTT}, 16")
    a(f"s_mul_i32 s{sT0}, s{sTT}, 18")
    a(f"s_sub_u32 s{sCG}, s{sUnit}, s{sT0}")
    a(f"s_lshr_b32 s{sB}, s{sTT}, 2")
    a(f"s_lshl_b32 s{sT0}, s{sUnit}, 12")
    a(f"s_add_u32 s{sT0}, s{sT0}, {WS_U}")
    for q in range(4):
        a(f"buffer_load_dwordx4 {vr(sU+4*q,4)}, v{vLane16}, {sr(S_WS,4)}, s{sT0} offen offset:{1024*q}")
    a("v_and_b32 v60, 31, v1")
    a("v_lshlrev_b32 v61, 3, v60")
    a("v_lshrrev_b32 v62, 5, v1")
    a(f"v_mul_u32_u24 v62, {576*8}, v62")
    a("v_add_u32 v62, v62, v61")
    a(f"s_lshl_b32 s{sT1}, s{sCG}, 8")
    a(f"s_mul_i32 s{sT0}, s{sTT}, {2*576*8}")
    a(f"s_add_u32 s{sT0}, s{sT0}, s{sT1}")
    a(f"s_add_u32 s{sT0}, s{sT0}, {WS_P}")
    a(f"buffer_load_dwordx2 {vr(sP_,2)}, v62, {sr(S_WS,4)}, s{sT0} offen")
    a(f"s_and_b32 s{sT0}, s{sTT}, 3")
    a(f"s_mul_i32 s{sT0}, s{sT0}, {2*576*8}")
    a(f"s_add_u32 s{sT0}, s{sT0}, s{sT1}")
    a(f"s_add_u32 s{sT0}, s{sT0}, {WS_T}")
    a(f"buffer_load_dwordx2 {vr(sL16,2)}, v62, {sr(S_WS,4)}, s{sT0} offen")
    a(f"s_add_u32 s{sT0}, s{sT1}, {WS_T + 8*576*8}")
    a(f"buffer_load_dwordx2 {vr(sLam,2)}, v61, {sr(S_WS,4)}, s{sT0} offen")
    a(f"s_add_u32 s{sT0}, s{sT1}, {WS_T + 9*576*8}")
    a(f"buffer_load_dwordx2 {vr(sL128,2)}, v61, {sr(S_WS,4)}, s{sT0} offen")
    a(f"s_lshl_b32 s{sT0}, s{sTT}, 7")
    a(f"s_add_u32 s{sT0}, s{sT0}, {WS_G}")
    a("v_lshlrev_b32 v60, 2, v60")
    a(f"buffer_load_dword v{sG1}, v60, {sr(S_WS,4)}, s{sT0} offen")
    a(f"s_add_u32 s{sT0}, s{sT1}, {WS_E}")
    for i in range(15):
        a(f"s_cmp_le_u32 s{sB}, {i}")
        a("s_cbranch_scc1 k2_eld_done")
        a(f"buffer_load_dwordx2 {vr(sE+2*i,2)}, v61, {sr(S_WS,4)}, s{sT0} offen")
        if i < 14: a(f"s_add_u32 s{sT0}, s{sT0}, {576*8}")
    a.label("k2_eld_done")

def scan_compute(a):
    C = [62, 120]
    a(f"v_mov_b32 v{C[0]}, 0")
    a(f"v_mov_b32 v{C[0]+1}, 0")
    for i in range(15):
        a(f"s_cmp_le_u32 s{sB}, {i}")
        a("s_cbranch_scc1 k2_horner_done")
        pk_step(a, C[1], sL128, C[0], sE + 2 * i)
        a(f"v_pk_mov_b32 {vr(C[0],2)}, {vr(C[1],2)}, {vr(C[1],2)} op_sel:[0,1]")
    a.label("k2_horner_done")
    pk_step(a, sP_, sL16, C[0], sP_)
    a(f"v_sub_f32 v{sG1}, 1.0, v{sG1}")
    a(f"v_cvt_pk_bf16_f32 v{sG1}, v{sG1}, v{sG1}")
    a("v_and_b32 v7, 1, v1")
    a("v_cmp_eq_u32 vcc, 1, v7")
    a("v_mov_b32 v7, 0xffff")
    a("v_mov_b32 v60, 0xffff0000")
    a("v_cndmask_b32 v7, v7, v60, vcc")
    a(f"v_and_b32 v{sG1}, v{sG1}, v7")
    a("v_and_b32 v7, 31, v1")
    a("v_lshrrev_b32 v60, 5, v1")
    a("v_lshlrev_b32 v60, 4, v60")
    a("v_sub_u32 v7, v7, v60")
    a("v_lshrrev_b32 v7, 1, v7")
    for i in range(8):
        a(f"v_cmp_eq_u32 vcc, {i}, v7")
        a(f"v_cndmask_b32 v{sBd+i}, 0, v{sG1}, vcc")
    prev = sP_
    for r in range(16):
        a(f"v_lshlrev_b32 v{sH+2*r}, 16, v{sU+r}")
        a(f"v_and_b32 v{sH+2*r+1}, 0xffff0000, v{sU+r}")
    for r in range(16):
        pk_step(a, sH + 2 * r, sLam, prev, sH + 2 * r)
        prev = sH + 2 * r
        if r & 1:
            a(f"v_cvt_pk_bf16_f32 v{sA+r//2}, v{sH+2*r-2}, v{sH+2*r}")
            a(f"v_cvt_pk_bf16_f32 v{sA+8+r//2}, v{sH+2*r-1}, v{sH+2*r+1}")
    for part in range(2):
        a(f"v_mfma_f32_32x32x16_bf16 {vr(sD+16*part,16)}, {vr(sA+8*part,4)}, {vr(sBd,4)}, 0")
    for part in range(2):
        a(f"v_mfma_f32_32x32x16_bf16 {vr(sD+16*part,16)}, {vr(sA+8*part+4,4)}, {vr(sBd+4,4)}, {vr(sD+16*part,16)}")
    a(f"s_mul_i32 s{sT0}, s{sTT}, {NSTEP}")
    a(f"s_lshl_b32 s{sT1}, s{sCG}, 2")
    a(f"s_add_u32 s{sT0}, s{sT0}, s{sT1}")
    a(f"s_add_u32 s{sT0}, s{sT0}, 36")
    a(f"s_lshl_b32 s{sT0}, s{sT0}, 10")
    a(f"s_add_u32 s{sT0}, s{sT0}, {WS_AF}")
    for i in range(4):
        for j in range(4):
            a(f"v_cvt_pk_bf16_f32 v{sH+4*i+j}, v{sD+8*i+2*j}, v{sD+8*i+2*j+1}")
        a(f"buffer_store_dwordx4 {vr(sH+4*i,4)}, v{vLane16}, {sr(S_WS,4)}, s{sT0} offen offset:{1024*i}")

def kreads(a, buf, areg, off):
    a(f"ds_read_b64_tr_b16 {vr(buf,2)}, v{areg} offset:{off}")
    a(f"ds_read_b64_tr_b16 {vr(buf+2,2)}, v{areg} offset:{off+64}")
    a(f"ds_read_b64_tr_b16 {vr(buf+4,2)}, v{areg} offset:{off+256}")

def vreads(a, buf, off):
    a(f"ds_read_b128 {vr(buf,4)}, v{vVA} offset:{off}")
    a(f"ds_read_b128 {vr(buf+4,4)}, v{vVA} offset:{off+608}")

def addr_init(a):
    a("v_bfe_u32 v6, v1, 4, 1")
    a("v_and_b32 v7, 1, v1")
    a("v_lshl_add_u32 v6, v6, 1, v7")
    a("v_mul_u32_u24 v6, 288, v6")
    a("v_lshrrev_b32 v7, 5, v1")
    a("v_lshl_add_u32 v6, v7, 7, v6")
    a(f"v_mul_u32_u24 v{vVA}, 304, v7")
    a("v_bfe_u32 v7, v1, 2, 2")
    a("v_lshl_add_u32 v6, v7, 4, v6")
    a("v_bfe_u32 v7, v1, 1, 1")
    a(f"v_lshl_add_u32 v{vKA}, v7, 3, v6")
    a("v_and_b32 v7, 31, v1")
    a(f"v_lshl_add_u32 v{vVA}, v7, 4, v{vVA}")
    a(f"v_add_u32 v{vVA}, 1152, v{vVA}")

def gen_k2():
    a = Asm()
    a("s_cmp_ge_u32 s2, 256")
    a("s_cbranch_scc1 k2_end")
    srd(a, S_WS, KA_WS, WS_SIZE)
    a("v_lshrrev_b32 v2, 6, v0")
    a("v_and_b32 v1, 63, v0")
    a(f"v_readfirstlane_b32 s{sW}, v2")
    a(f"v_lshlrev_b32 v{vLane16}, 4, v1")
    a(f"s_and_b32 s{sHead}, s2, 31")
    a(f"s_lshr_b32 s{sQB}, s2, 5")
    a(f"s_lshl_b32 s{sUnit}, s2, 2")
    a(f"s_add_u32 s{sUnit}, s{sUnit}, s{sW}")
    a(f"s_lshr_b32 s{sT0}, s2, 1")
    a(f"s_add_u32 s{sT0}, s{sT0}, 1024")
    a(f"s_and_b32 s{sT1}, s2, 1")
    a(f"s_cmp_eq_u32 s{sT1}, 0")
    a(f"s_cselect_b32 s{sT0}, s{sT0}, 0x7fff")
    a(f"s_cmp_eq_u32 s{sW}, 4")
    a(f"s_cselect_b32 s{sT0}, s{sT0}, 0x7fff")
    a(f"s_cmp_lt_u32 s{sW}, 4")
    a(f"s_cselect_b32 s{sUnit}, s{sUnit}, s{sT0}")
    a("s_waitcnt lgkmcnt(0)")
    a(f"s_cmp_ge_u32 s{sUnit}, 1152")
    a("s_cbranch_scc1 k2_noscanld")
    scan_loads(a)
    a.label("k2_noscanld")
    a(f"s_lshl_b32 s{sT0}, s{sQB}, 10")
    a(f"s_lshl_b32 s{sT1}, s{sW}, 7")
    a(f"s_add_u32 s{sT0}, s{sT0}, s{sT1}")
    a(f"s_add_u32 s{sT0}, s{sT0}, {WS_G}")
    a("v_and_b32 v7, 31, v1")
    a("v_lshlrev_b32 v7, 2, v7")
    a(f"buffer_load_dword v{vG}, v7, {sr(S_WS,4)}, s{sT0} offen")
    a(f"s_mul_i32 s{sT0}, s{sHead}, {KV_HS}")
    a(f"s_add_u32 s{sT0}, s{sT0}, {WS_KV}")
    a(f"s_lshl_b32 s{sT1}, s{sW}, 10")
    a(f"s_add_u32 s{sT2}, s{sT0}, s{sT1}")
    def piece(i):
        a(f"s_add_u32 m0, s{sT1}, {i*8192}")
        a(f"buffer_load_dwordx4 v{vLane16}, {sr(S_WS,4)}, s{sT2} offen lds")
        a(f"s_add_u32 s{sT2}, s{sT2}, 8192")
    for i in range(3): piece(i)
    a(f"s_mul_i32 s{sT3}, s{sHead}, {Q_HS}")
    a(f"s_mul_i32 s{sT4}, s{sQB}, {8*Q_TS}")
    a(f"s_add_u32 s{sT3}, s{sT3}, s{sT4}")
    if WS_Q: a(f"s_add_u32 s{sT3}, s{sT3}, {WS_Q}")
    a(f"s_add_u32 s{sT4}, s{sT3}, s{sT1}")
    a(f"s_add_u32 m0, s{sT1}, {LQ}")
    a(f"buffer_load_dwordx4 v{vLane16}, {sr(S_WS,4)}, s{sT4} offen lds")
    a(f"s_add_u32 s{sT4}, s{sT3}, 8192")
    a(f"s_mov_b32 m0, {LQ + 8192}")
    a(f"buffer_load_dwordx4 v{vLane16}, {sr(S_WS,4)}, s{sT4} offen lds")
    for i in range(3, 18): piece(i)
    a(f"s_and_b32 s{sT1}, s{sT1}, 0xfff")
    a(f"s_add_u32 s{sT2}, s{sT0}, s{sT1}")
    a(f"s_add_u32 s{sT2}, s{sT2}, {18*8192}")
    a(f"s_add_u32 m0, s{sT1}, {18*8192}")
    a(f"buffer_load_dwordx4 v{vLane16}, {sr(S_WS,4)}, s{sT2} offen lds")
    addr_init(a)
    a("s_waitcnt vmcnt(16)")
    a("s_barrier")
    a(f"s_cmp_ge_u32 s{sUnit}, 1152")
    a("s_cbranch_scc1 k2_noscan")
    scan_compute(a)
    a.label("k2_noscan")
    a(f"s_mul_i32 s{sT0}, s{sW}, {Q_TS}")
    a(f"s_add_u32 s{sT0}, s{sT0}, {LQ}")
    a(f"v_add_u32 v6, s{sT0}, v{vKA}")
    kreads(a, vQ, 6, 0)
    for r in range(16): a(f"v_mov_b32 v{vNM+r}, 0")
    a(f"s_mov_b32 s{sPass}, 0")
    a("s_waitcnt lgkmcnt(0)")
    a(f"v_mov_b32 v{vQr+1}, 0")
    a("s_mov_b32 exec_lo, 0")
    a(f"v_mov_b32 v{vQr}, 0")
    a("s_mov_b32 exec_lo, -1")
    a.label("k2_pass")
    kreads(a, vK[0], vKA, 0)
    kreads(a, vK[1], vKA, KV_TS)
    vreads(a, vV[0], 0)
    for r in range(16): a(f"v_mov_b32 v{vO+r}, 0")
    for r in range(4):
        a(f"v_mov_b32 v{vV[1]+4+r}, 0")
        a(f"v_mov_b32 v{vP+4+r}, 0")
    a(f"s_mov_b32 s{sIt}, 0")
    a("s_waitcnt lgkmcnt(5)")
    a(f"v_mfma_f32_32x32x16_bf16 {vr(vS[0],16)}, {vr(vK[0],4)}, {vr(vQ,4)}, {vr(vNM,16)}")
    a(f"v_mfma_f32_32x32x8_bf16 {vr(vS[0],16)}, {vr(vK[0]+4,2)}, {vr(vQr,2)}, {vr(vS[0],16)}")
    a(".p2align 3")
    a.label("k2_loop")
    for j in range(U):
        c, n = j & 1, (j + 1) & 1
        Sc, Sn = vS[c], vS[n]
        ex = lambda r: a(f"v_exp_f32 v{Sc+r}, v{Sc+r}")
        cv = lambda k: a(f"v_cvt_pk_bf16_f32 v{vP+k}, v{Sc+2*k}, v{Sc+2*k+1}")
        a("s_waitcnt lgkmcnt(0)")
        kreads(a, vK[c], vKA, (j + 2) * KV_TS)
        a(f"v_mfma_f32_32x32x16_bf16 {vr(vO,16)}, {vr(vV[n]+4,4)}, {vr(vP+4,4)}, {vr(vO,16)}")
        vreads(a, vV[n], (j + 1) * KV_TS)
        for r in range(5): ex(r)
        a(f"v_mfma_f32_32x32x16_bf16 {vr(Sn,16)}, {vr(vK[n],4)}, {vr(vQ,4)}, {vr(vNM,16)}")
        for r in range(5, 8): ex(r)
        for k in range(4): cv(k)
        a(f"v_mfma_f32_32x32x8_bf16 {vr(Sn,16)}, {vr(vK[n]+4,2)}, {vr(vQr,2)}, {vr(Sn,16)}")
        for r in range(8, 13): ex(r)
        a(f"v_mfma_f32_32x32x16_bf16 {vr(vO,16)}, {vr(vV[c],4)}, {vr(vP,4)}, {vr(vO,16)}")
        for r in range(13, 16): ex(r)
        for k in range(4, 8): cv(k)
    a(f"v_add_u32 v{vKA}, {U*KV_TS}, v{vKA}")
    a(f"v_add_u32 v{vVA}, {U*KV_TS}, v{vVA}")
    a(f"s_or_b32 s{sT0}, s{sIt}, s{sPass}")
    a(f"s_add_u32 s{sIt}, s{sIt}, 1")
    a(f"s_cmp_lg_u32 s{sT0}, 0")
    a("s_cbranch_scc1 k2_nobar")
    a("s_waitcnt vmcnt(0)")
    a("s_barrier")
    a.label("k2_nobar")
    a(f"s_cmp_lt_u32 s{sIt}, {64//U}")
    a("s_cbranch_scc1 k2_loop")
    a(f"v_mfma_f32_32x32x16_bf16 {vr(vO,16)}, {vr(vV[1]+4,4)}, {vr(vP+4,4)}, {vr(vO,16)}")
    a(f"v_add_u32 v{vKA}, {(-64*KV_TS) & 0xffffffff}, v{vKA}")
    a(f"v_add_u32 v{vVA}, {(-64*KV_TS) & 0xffffffff}, v{vVA}")
    a("s_waitcnt lgkmcnt(0)")
    a(f"v_mov_b32 v6, v{vO+10}")
    a(f"v_mov_b32 v7, v{vO+10}")
    a("v_permlane32_swap_b32 v6, v7")
    a(f"s_cmp_lg_u32 s{sPass}, 0")
    a("s_cbranch_scc1 k2_fin")
    a("v_mov_b32 v7, 0")
    for r in range(8): a(f"v_fmac_f32 v7, 0, v{vO+r}")
    a("s_mov_b32 exec_hi, 0")
    for r in range(8, 10): a(f"v_fmac_f32 v7, 0, v{vO+r}")
    a("s_mov_b32 exec_hi, -1")
    a("v_add_f32 v7, v7, v6")
    a(f"s_mov_b32 s{sT0}, {f32(2.0**-16)}")
    a(f"s_mov_b32 s{sT1}, {f32(2.0**64)}")
    a(f"v_cmp_nle_f32 vcc, s{sT0}, v7")
    a(f"v_cmp_nge_f32 s[24:25], s{sT1}, v7")
    a("s_or_b64 vcc, vcc, s[24:25]")
    a("s_cbranch_vccz k2_fin")
    M = vP
    a(f"v_mov_b32 v{M}, 0xff800000")
    a(f"v_mov_b32 v6, v{vKA}")
    a(f"s_mov_b32 s{sIt}, 0")
    a.label("k2_max")
    kreads(a, vK[0], 6, 0)
    a(f"v_add_u32 v6, {KV_TS}, v6")
    a("s_waitcnt lgkmcnt(0)")
    a(f"v_mfma_f32_32x32x16_bf16 {vr(vS[0],16)}, {vr(vK[0],4)}, {vr(vQ,4)}, 0")
    a(f"v_mfma_f32_32x32x8_bf16 {vr(vS[0],16)}, {vr(vK[0]+4,2)}, {vr(vQr,2)}, {vr(vS[0],16)}")
    a(f"s_add_u32 s{sIt}, s{sIt}, 1")
    for k in range(8):
        a(f"v_max3_f32 v{M}, v{M}, v{vS[0]+2*k}, v{vS[0]+2*k+1}")
    a(f"s_cmp_lt_u32 s{sIt}, 64")
    a("s_cbranch_scc1 k2_max")
    a(f"v_mov_b32 v6, v{M}")
    a(f"v_permlane32_swap_b32 v6, v{M}")
    a(f"v_max_f32 v6, v6, v{M}")
    for r in range(16): a(f"v_sub_f32 v{vNM+r}, 0, v6")
    a(f"s_mov_b32 s{sPass}, 1")
    a("s_branch k2_pass")
    a.label("k2_fin")
    a("v_rcp_f32 v6, v6")
    a(f"s_lshl_b32 s{sT0}, s{sQB}, 3")
    a(f"s_add_u32 s{sT0}, s{sT0}, s{sW}")
    a(f"s_mul_i32 s{sT0}, s{sT0}, {NSTEP*1024}")
    a(f"s_add_u32 s{sT0}, s{sT0}, {WS_AF}")
    a(f"s_lshl_b32 s{sT1}, s{sHead}, 10")
    a(f"s_add_u32 s{sT1}, s{sT1}, s{sT0}")
    a(f"v_mul_f32 v6, v6, v{vG}")
    for r in range(10): a(f"v_mul_f32 v{vO+r}, v6, v{vO+r}")
    for k in range(5): a(f"v_cvt_pk_bf16_f32 v{vP+k}, v{vO+2*k}, v{vO+2*k+1}")
    a(f"buffer_store_dwordx4 {vr(vP,4)}, v{vLane16}, {sr(S_WS,4)}, s{sT1} offen")
    a(f"s_lshr_b32 s{sT1}, s{sHead}, 2")
    a(f"s_lshl_b32 s{sT1}, s{sT1}, 9")
    a(f"s_and_b32 s{sT2}, s{sHead}, 3")
    a(f"s_lshl_b32 s{sT2}, s{sT2}, 2")
    a(f"s_add_u32 s{sT0}, s{sT0}, s{sT1}")
    a(f"s_add_u32 s{sT0}, s{sT0}, s{sT2}")
    a(f"s_add_u32 s{sT0}, s{sT0}, {32*1024}")
    a("s_mov_b32 exec_hi, 0")
    a(f"buffer_store_dword v{vP+4}, v{vLane16}, {sr(S_WS,4)}, s{sT0} offen")
    a.label("k2_end")
    a("s_endpgm")
    return a
```

```python
from common import *

S_WS, S_X, S_DS, S_OUT = 8, 12, 16, 20
sW, sRB, sNB = 3, 4, 5
sA0, sA1, sB0, sB1, sB2 = 24, 25, 26, 27, 28
sT0, sT1, sT2 = 30, 31, 32
NS = NSTEP // 4
DEPTH = 6
vL16 = 2
vX = 4
vG = 28
vD = 36
vE = 39
vBUF = 40
vAC = vBUF + 20 * DEPTH
K3_LDS = 4 * 24 * 1024

def gen_k3():
    a = Asm()
    a("s_cmp_ge_u32 s2, 192")
    a("s_cbranch_scc1 k3_end")
    srd(a, S_WS, KA_WS, WS_SIZE)
    srd(a, S_X, KA_X, S * D * 2)
    srd(a, S_DS, KA_DSKIP, D * 2)
    srd(a, S_OUT, KA_OUT, S * D * 4)
    a("v_lshrrev_b32 v2, 6, v0")
    a("v_and_b32 v1, 63, v0")
    a(f"v_readfirstlane_b32 s{sW}, v2")
    a(f"v_lshlrev_b32 v{vL16}, 4, v1")
    a(f"s_and_b32 s{sT0}, s2, 7")
    a(f"s_bfe_u32 s{sT1}, s2, 0x20003")
    a(f"s_lshl_b32 s{sRB}, s{sT0}, 2")
    a(f"s_add_u32 s{sRB}, s{sRB}, s{sT1}")
    a(f"s_lshr_b32 s{sNB}, s2, 5")
    a(f"s_mul_i32 s{sT0}, s{sW}, {NS*1024}")
    a(f"s_mul_i32 s{sA0}, s{sRB}, {2*NSTEP*1024}")
    a(f"s_add_u32 s{sA0}, s{sA0}, s{sT0}")
    a(f"s_add_u32 s{sA0}, s{sA0}, {WS_AF}")
    a(f"s_add_u32 s{sA1}, s{sA0}, {NSTEP*1024}")
    a(f"s_mul_i32 s{sB0}, s{sNB}, {3*NSTEP*1024}")
    a(f"s_add_u32 s{sB0}, s{sB0}, s{sT0}")
    a(f"s_add_u32 s{sB0}, s{sB0}, {WS_BF}")
    a(f"s_add_u32 s{sB1}, s{sB0}, {NSTEP*1024}")
    a(f"s_add_u32 s{sB2}, s{sB1}, {NSTEP*1024}")
    a("s_waitcnt lgkmcnt(0)")
    def issue(j):
        B = vBUF + 20 * (j % DEPTH)
        for i, s in enumerate((sA0, sB0, sA1, sB1, sB2)):
            slot = (0, 2, 1, 3, 4)[i]
            a(f"buffer_load_dwordx4 {vr(B+4*slot,4)}, v{vL16}, {sr(S_WS,4)}, s{s} offen offset:{(j%4)*1024}")
        if j % 4 == 3:
            for s in (sA0, sA1, sB0, sB1, sB2): a(f"s_add_u32 s{s}, s{s}, 4096")
    for j in range(DEPTH): issue(j)
    a("v_lshrrev_b32 v3, 5, v1")
    a(f"s_lshl_b32 s{sT0}, s{sRB}, 6")
    a(f"s_lshl_b32 s{sT1}, s{sW}, 3")
    a(f"s_add_u32 s{sT0}, s{sT0}, s{sT1}")
    a(f"v_lshl_add_u32 v3, v3, 2, s{sT0}")
    a(f"v_mul_u32_u24 v{vE}, 576, v3")
    a(f"s_mul_i32 s{sT1}, s{sNB}, 96")
    a(f"v_and_b32 v{vD}, 31, v1")
    a(f"v_add_u32 v{vD}, s{sT1}, v{vD}")
    a(f"v_add_u32 v{vE}, v{vE}, v{vD}")
    a(f"v_lshlrev_b32 v{vD+2}, 1, v{vD}")
    a(f"v_lshlrev_b32 v{vG+7}, 1, v{vE}")
    a(f"s_mov_b32 s{sT1}, {32*1152}")
    NEPI = 24 + 3 + 2
    for aa in range(2):
        for i in range(4):
            for b in range(3):
                a(f"buffer_load_ushort v{vX+12*aa+3*i+b}, v{vG+7}, {sr(S_X,4)}, {'0' if aa == 0 else 's%d' % sT1} offen offset:{1152*i+64*b}")
    a("v_lshlrev_b32 v3, 2, v3")
    a(f"s_mov_b32 s{sT2}, {WS_G}")
    for b in range(3):
        a(f"buffer_load_ushort v{vD+b}, v{vD+2}, {sr(S_DS,4)}, 0 offen offset:{64*b}")
    for aa in range(2):
        a(f"buffer_load_dwordx4 {vr(vG+4*aa,4)}, v3, {sr(S_WS,4)}, s{sT2} offen offset:{128*aa}")
    for j in range(NS):
        newer = min(NS, j + DEPTH) - (j + 1)
        cnt = 5 * newer + (NEPI if j < DEPTH else 0)
        a(f"s_waitcnt vmcnt({min(cnt, 63)})")
        B = vBUF + 20 * (j % DEPTH)
        for aa in range(2):
            for b in range(3):
                acc = vAC + 16 * (3 * aa + b)
                a(f"v_mfma_f32_32x32x16_bf16 {vr(acc,16)}, {vr(B+4*aa,4)}, {vr(B+8+4*b,4)}, {'0' if j == 0 else vr(acc,16)}")
        if j + DEPTH < NS: issue(j + DEPTH)
    a(f"s_mul_i32 s{sT0}, s{sW}, {24*1024}")
    a(f"v_add_u32 v3, s{sT0}, v{vL16}")
    for t in range(6):
        for g in range(4):
            a(f"ds_write_b128 v3, {vr(vAC+16*t+4*g,4)} offset:{(g*6+t)*1024}")
    a(f"s_mul_i32 s{sT0}, s{sW}, {6*1024}")
    a(f"v_add_u32 v3, s{sT0}, v{vL16}")
    a(f"v_add_u32 v1, {48*1024}, v3")
    for i in range(8): a(f"v_sub_f32 v{vG+i}, 1.0, v{vG+i}")
    for b in range(3): a(f"v_lshlrev_b32 v{vD+b}, 16, v{vD+b}")
    for aa in range(2):
        for i in range(4):
            for b in range(3):
                x = vX + 12 * aa + 3 * i + b
                a(f"v_lshlrev_b32 v{x}, 16, v{x}")
                a(f"v_mul_f32 v{x}, v{x}, v{vD+b}")
                a(f"v_mul_f32 v{x}, v{x}, v{vG+4*aa+i}")
    a(f"v_lshlrev_b32 v{vE}, 2, v{vE}")
    a("s_waitcnt lgkmcnt(0)")
    a("s_barrier")
    R = vBUF
    for t in range(6):
        for src in range(4):
            a(f"ds_read_b128 {vr(R+16*t+4*src,4)}, v{3 if src < 2 else 1} offset:{(src&1)*24*1024 + t*1024}")
        if t == 2: a("s_waitcnt lgkmcnt(3)")
    sR = [0, 33, 34, 35, 36, 37, 38, 39]
    for k in range(1, 8):
        a(f"s_mov_b32 s{sR[k]}, {((k >> 2) * 32 + (k & 3)) * 2304}")
    for t in range(6):
        if t == 0: a("s_waitcnt lgkmcnt(12)")
        if t == 3: a("s_waitcnt lgkmcnt(0)")
        aa, b = t // 3, t % 3
        for i in range(4):
            x = vX + 12 * aa + 3 * i + b
            q = R + 16 * t + i
            a(f"v_add_f32 v{q}, v{q}, v{q+4}")
            a(f"v_add_f32 v{q+8}, v{q+8}, v{q+12}")
            a(f"v_add_f32 v{x}, v{x}, v{q}")
            a(f"v_add_f32 v{x}, v{x}, v{q+8}")
            k = 4 * aa + i
            a(f"buffer_store_dword v{x}, v{vE}, {sr(S_OUT,4)}, {'0' if k == 0 else 's%d' % sR[k]} offen offset:{128*b}")
    a.label("k3_end")
    a("s_endpgm")
    return a
```

```python
import sys
from asmtool import fix_hazards, max_regs
from common import *
import k1, k2, k3

NAME = "gated_mix__mha_block__ssm_conv_s5__prompt"
def build(out, verbose=False):
    ref = open("cdna_kernels/" + NAME + ".s.ref").read().split("\n")
    head = [l for l in ref if l.startswith(";") and "@launch" not in l and "Override launch" not in l and "grid=ceil" not in l]
    ks = [("k1_kernel", k1.gen_k1(), 256, 512, 163840),
          ("k2_kernel", k2.gen_k2(), 256, 512, k2.K2_LDS),
          ("k3_kernel", k3.gen_k3(), 192, 256, k3.K3_LDS)]
    txt = "\n".join(head) + "\n"
    for n, _, g, b, lds in ks:
        txt += f"; @launch kernel={n} grid=({g},1,1) block=({b},1,1) lds={lds}\n"
    txt += '.amdgcn_target "amdgcn-amd-amdhsa--gfx950"\n.text\n'
    for n, a, g, b, lds in ks:
        body, nfix = fix_hazards(a.text(), verbose)
        v, s, ag = max_regs(body)
        acc = (v + 3) // 4 * 4
        nv = acc + ag if ag else v
        print(f"{n}: {len(body.splitlines())} lines, {nfix} nops added, vgpr {v} agpr {ag} sgpr {s}", file=sys.stderr)
        txt += f".globl {n}\n.p2align 8\n.type {n},@function\n{n}:\n" + body + kernel_footer(n, nv, max(s, 16), acc)
    open(out, "w").write(txt)

if __name__ == "__main__":
    build(sys.argv[1] if len(sys.argv) > 1 else "cdna_kernels/" + NAME + ".s", "-v" in sys.argv)
```

```python
import struct, math
from asmtool import Asm, vr, ar, sr

def f32(x):
    return "0x%08x" % struct.unpack("<I", struct.pack("<f", x))[0]

S, D, H, DH = 2048, 576, 32, 18
LOG2E = math.log2(math.e)
QSCALE = LOG2E / math.sqrt(DH)
INV2PI = 1.0 / (2 * math.pi)

KA_X, KA_WQKV, KA_WO, KA_BX, KA_LRE, KA_LIM, KA_BRE, KA_BIM, KA_CRE, KA_CIM, KA_LOGDT, KA_DSKIP, KA_GW, KA_OUT, KA_DBG, KA_WS = [8 * i for i in range(16)]

Q_TS, Q_HS = 1152, 64 * 1152
KV_TS, KV_HS = 2368, 64 * 2368
WS_Q = 0
WS_KV = WS_Q + 32 * Q_HS
WS_U = WS_KV + 32 * KV_HS
NSTEP = 108
WS_AF = WS_U + 64 * 18 * 4096
WS_BF = WS_AF + 64 * NSTEP * 1024
WS_P = WS_BF + 18 * NSTEP * 1024
WS_E = WS_P + 128 * 576 * 8
WS_T = WS_E + 16 * 576 * 8
WS_G = WS_T + 10 * 576 * 8
WS_END = WS_G + 2048 * 4
WS_SIZE = 1 << 25
assert WS_END <= WS_SIZE

def srd(a, s, ka, nbytes):
    a(f"s_load_dwordx2 {sr(s,2)}, s[0:1], {ka}")
    a(f"s_mov_b32 s{s+2}, {nbytes}")
    a(f"s_mov_b32 s{s+3}, 0x20000")

def lam_base(a, lre, lim, ldt):
    a(f"v_lshlrev_b32 v{lre}, 16, v{lre}")
    a(f"v_lshlrev_b32 v{lim}, 16, v{lim}")
    a(f"v_lshlrev_b32 v{ldt}, 16, v{ldt}")
    a(f"v_mul_f32 v{ldt}, {f32(LOG2E)}, v{ldt}")
    a(f"v_exp_f32 v{ldt}, v{ldt}")
    a(f"v_cvt_pk_bf16_f32 v{ldt}, v{ldt}, v{ldt}")
    a(f"v_and_b32 v{ldt}, 0xffff0000, v{ldt}")
    a(f"v_mul_f32 v{lre}, v{ldt}, v{lre}")
    a(f"v_mul_f32 v{lim}, v{ldt}, v{lim}")
    a(f"v_mul_f32 v{lre}, {f32(LOG2E)}, v{lre}")
    a(f"v_mul_f32 v{lim}, {f32(INV2PI)}, v{lim}")

def lam_pow(a, dre, dim, ea, ph, k, t):
    ks = k if isinstance(k, str) else f32(float(k))
    a(f"v_mul_f32 v{t}, {ks}, v{ea}")
    a(f"v_mul_f32 v{dim}, {ks}, v{ph}")
    a(f"v_exp_f32 v{t}, v{t}")
    a(f"v_fract_f32 v{dim}, v{dim}")
    a(f"v_cos_f32 v{dre}, v{dim}")
    a(f"v_sin_f32 v{dim}, v{dim}")
    a(f"v_mul_f32 v{dre}, v{t}, v{dre}")
    a(f"v_mul_f32 v{dim}, v{t}, v{dim}")

def kernel_footer(name, vgpr, sgpr, accum):
    return f""".section .rodata,"a"
.p2align 6
.amdhsa_kernel {name}
  .amdhsa_next_free_vgpr {vgpr}
  .amdhsa_next_free_sgpr {sgpr}
  .amdhsa_accum_offset {accum}
  .amdhsa_group_segment_fixed_size 0
  .amdhsa_kernarg_size 128
  .amdhsa_user_sgpr_count 2
  .amdhsa_user_sgpr_kernarg_segment_ptr 1
  .amdhsa_system_sgpr_workgroup_id_x 1
.end_amdhsa_kernel
.text
"""

PROF = False
WS_PROF = 24 << 20
def set_prof(v):
    global PROF
    PROF = v
def stamp(a, i):
    if not PROF: return
    a(f"s_memtime s[{70+2*i}:{71+2*i}]")
    a("s_waitcnt lgkmcnt(0)")
def stamp_flush(a, n, kidx, s_ws, s_wave, vt=250):
    if not PROF: return
    a("s_mov_b64 exec, -1")
    a("s_memrealtime s[98:99]")
    a("s_waitcnt lgkmcnt(0)")
    a(f"v_mov_b32 v{vt}, 0")
    for i in range(n):
        a(f"v_writelane_b32 v{vt}, s{70+2*i}, {i}")
    a(f"v_writelane_b32 v{vt}, s96, 14")
    a(f"v_writelane_b32 v{vt}, s98, 15")
    a(f"s_lshl_b32 s98, s2, 3")
    a(f"s_add_u32 s98, s98, s{s_wave}")
    a(f"s_lshl_b32 s98, s98, 6")
    a(f"s_add_u32 s98, s98, {WS_PROF + (kidx << 20)}")
    a(f"v_mbcnt_lo_u32_b32 v{vt+1}, -1, 0")
    a(f"v_lshlrev_b32 v{vt+1}, 2, v{vt+1}")
    a("s_mov_b64 exec, 0xffff")
    a(f"buffer_store_dword v{vt}, v{vt+1}, s[{s_ws}:{s_ws+3}], s98 offen")
def stamp_start(a):
    if not PROF: return
    a("s_memrealtime s[96:97]")
    stamp(a, 0)
```

```python
from common import *
import common

SLOT = 40960
WOFF = 16384
NST = 9
sRB, sCT, sW = 3, 4, 5
S_X, S_W, S_W2, S_WS = 8, 12, 16, 20
sT0, sT1, sT2, sT3, sT4, sT5 = 24, 25, 26, 27, 28, 29
S_A, S_B, S_C = 32, 36, 40
sLW = 44

def loader(a, typ):
    L = f"k1_{typ}_ld"
    vX, vW = 8, 12
    a(f"s_sub_u32 s{sLW}, s{sW}, 4")
    a(f"s_and_b32 s{sT0}, s{sLW}, 1")
    a(f"s_lshl_b32 s{sT0}, s{sT0}, 2")
    a(f"v_lshrrev_b32 v2, 4, v1")
    a(f"v_add_u32 v2, s{sT0}, v2")
    a(f"v_and_b32 v3, 7, v1")
    a(f"v_xor_b32 v2, v2, v3")
    a(f"v_lshlrev_b32 v2, 4, v2")
    a(f"v_lshrrev_b32 v3, 3, v1")
    a(f"s_lshl_b32 s{sT1}, s{sLW}, 3")
    a(f"v_add_u32 v3, s{sT1}, v3")
    a(f"s_movk_i32 s{sT2}, 1152")
    a(f"v_mad_u32_u24 v4, v3, s{sT2}, v2")
    a(f"s_mul_i32 s{sT3}, s{sRB}, {128*1152}")
    for i in range(4):
        a(f"s_add_u32 s{sT4}, s{sT3}, {i*32*1152}")
        a(f"v_add_u32 v{vX+i}, s{sT4}, v4")
    if typ == "b":
        a(f"s_sub_u32 s{sT3}, s{sCT}, 9")
        a(f"s_mul_i32 s{sT3}, s{sT3}, {96*1152}")
        for u in range(6):
            a(f"s_add_u32 s{sT4}, s{sT3}, {(u>>1)*32*1152}")
            a(f"v_add_u32 v{vW+u}, s{sT4}, v4")
    else:
        a(f"s_lshl_b32 s{sT3}, s{sLW}, 6")
        a(f"s_movk_i32 s{sT4}, 2731")
        a(f"s_movk_i32 s{sT5}, 3456")
        a(f"s_mul_i32 s{sT2}, s{sCT}, 384")
        for i in range(6):
            a(f"v_add_u32 v5, s{sT3}, v1")
            if i: a(f"v_add_u32 v5, {256*i}, v5")
            a(f"v_mul_u32_u24 v6, s{sT4}, v5")
            a(f"v_lshrrev_b32 v6, 16, v6")
            a(f"v_mul_u32_u24 v7, 24, v6")
            a(f"v_sub_u32 v5, v5, v7")
            a(f"v_lshlrev_b32 v7, 1, v6")
            a(f"v_and_b32 v7, 4, v7")
            a(f"v_xor_b32 v5, v5, v7")
            a(f"v_lshlrev_b32 v5, 4, v5")
            a(f"v_mad_u32_u24 v5, v6, s{sT5}, v5")
            a(f"v_add_u32 v{vW+i}, s{sT2}, v5")
    a(f"s_lshl_b32 s{sLW}, s{sLW}, 10")
    a("s_waitcnt lgkmcnt(0)")
    def issue(t):
        slot = (t % 4) * SLOT
        a(f"s_movk_i32 s{sT0}, {t*128}")
        a(f"s_mov_b32 s{sT1}, {t*128 if typ == 'b' else t*64*3456}")
        for i in range(4):
            a(f"s_add_u32 m0, s{sLW}, {slot + i*4096}")
            a(f"buffer_load_dwordx4 v{vX+i}, {sr(S_X,4)}, s{sT0} offen lds")
        for i in range(6):
            a(f"s_add_u32 m0, s{sLW}, {slot + WOFF + i*4096}")
            d = S_W2 if (typ == "b" and i & 1) else S_W
            a(f"buffer_load_dwordx4 v{vW+i}, {sr(d,4)}, s{sT1} offen lds")
    stamp(a, 1)
    for t in range(4): issue(t)
    stamp(a, 2)
    issued = 3
    for t in range(NST):
        a(f"s_waitcnt vmcnt({10*(issued - t)})")
        stamp(a, 3 + t)
        a("s_barrier")
        if t >= 1 and t + 3 < NST:
            issue(t + 3); issued = t + 3
    stamp_flush(a, 12, 0, S_WS, sW)
    a("s_endpgm")

vXA = 2
vWA = 6
vEA = 10
vF = [16, 44]
vAC = 72
vL = 168
vPK = 186

def compute_main(a, typ):
    nread = 13 if typ == "w" else 7
    def reads(q):
        s = q % 4
        F = vF[q % 2]
        out = [f"ds_read_b128 {vr(F,4)}, v{vXA+s}"]
        for u in range(6):
            if typ == "w":
                for j2 in range(2):
                    out.append(f"ds_read_b64_tr_b16 {vr(F+4+4*u+2*j2,2)}, v{vWA+(u&1)} offset:{(16*s+4*j2)*384+u*64}")
            else:
                out.append(f"ds_read_b128 {vr(F+4+4*u,4)}, v{vWA+s} offset:{u*4096}")
        return out
    def advance(t):
        d = SLOT if t % 4 else -3 * SLOT
        regs = [vXA + i for i in range(4)] + [vWA + i for i in range(4 if typ == "b" else 2)]
        return [f"v_add_u32 v{r}, {d & 0xffffffff}, v{r}" for r in regs]
    stamp(a, 1)
    a("s_barrier")
    stamp(a, 2)
    for l in reads(0): a(l)
    for q in range(4 * NST):
        F = vF[q % 2]
        a("s_waitcnt lgkmcnt(0)")
        nxt = reads(q + 1) if q + 1 < 4 * NST else []
        newstage = (q + 1) % 4 == 0 and nxt
        per = [0, 3, 3, 3, 2, 2] if typ == "w" else [0, 2, 2, 1, 1, 1]
        if not newstage: per = [3, 2, 2, 2, 2, 2] if typ == "w" else [2, 1, 1, 1, 1, 1]
        for u in range(6):
            c = "0" if q == 0 else vr(vAC + 16 * u, 16)
            a(f"v_mfma_f32_32x32x16_bf16 {vr(vAC+16*u,16)}, {vr(F,4)}, {vr(F+4+4*u,4)}, {c}")
            if u == 0 and newstage:
                a("s_barrier")
                for l in advance((q + 1) // 4): a(l)
            k = per[u]
            for l in nxt[:k]: a(l)
            nxt = nxt[k:]
        assert not nxt
    stamp(a, 3)

def fin(a):
    if common.PROF:
        stamp(a, 4)
        a("s_waitcnt vmcnt(0)")
        stamp(a, 5)
        stamp_flush(a, 6, 0, S_WS, sW)
    a("s_endpgm")

def compute_w(a):
    a("v_and_b32 v12, 31, v1")
    a("v_lshrrev_b32 v13, 5, v1")
    a(f"s_lshl_b32 s{sT0}, s{sW}, 12")
    a("v_lshrrev_b32 v14, 1, v12")
    a("v_and_b32 v14, 7, v14")
    a("v_xor_b32 v14, v14, v13")
    a(f"v_lshl_add_u32 v15, v12, 7, s{sT0}")
    for s in range(4):
        a(f"v_xor_b32 v16, {2*s}, v14")
        a(f"v_lshl_add_u32 v{vXA+s}, v16, 4, v15")
    a("v_bfe_u32 v16, v1, 2, 2")
    a("v_lshl_add_u32 v17, v13, 3, v16")
    a(f"v_mul_u32_u24 v17, 384, v17")
    a("v_bfe_u32 v18, v1, 4, 1")
    a("v_lshl_add_u32 v17, v18, 5, v17")
    a("v_and_b32 v18, 3, v1")
    a("v_lshl_add_u32 v17, v18, 3, v17")
    a(f"v_add_u32 v17, {WOFF}, v17")
    a("v_bfe_u32 v18, v1, 3, 1")
    a("v_lshlrev_b32 v18, 6, v18")
    a(f"v_add_u32 v{vWA}, v17, v18")
    a(f"v_sub_u32 v{vWA+1}, v17, v18")
    a(f"s_mul_i32 s{sT0}, s{sCT}, 11")
    a(f"s_lshr_b32 s{sT0}, s{sT0}, 5")
    a(f"s_mul_i32 s{sT1}, s{sT0}, 3")
    a(f"s_sub_u32 s{sT1}, s{sCT}, s{sT1}")
    sHS, sCS, sB0, sB1, sKind, sJ, sTT = 46, 47, 48, 49, 50, 51, 52
    a(f"s_mov_b32 s{sKind}, s{sT0}")
    a(f"s_mov_b32 s{sJ}, s{sT1}")
    a(f"s_lshl_b32 s{sTT}, s{sRB}, 2")
    a(f"s_add_u32 s{sTT}, s{sTT}, s{sW}")
    a(f"s_cmp_eq_u32 s{sKind}, 0")
    a(f"s_cselect_b32 s{sHS}, {Q_HS}, {KV_HS}") if False else None
    a(f"s_mov_b32 s{sT2}, {Q_HS}")
    a(f"s_mov_b32 s{sT3}, {KV_HS}")
    a(f"s_cselect_b32 s{sHS}, s{sT2}, s{sT3}")
    a(f"s_movk_i32 s{sT2}, {Q_TS}")
    a(f"s_movk_i32 s{sT3}, {KV_TS}")
    a(f"s_cselect_b32 s{sT4}, s{sT2}, s{sT3}")
    a(f"s_mov_b32 s{sT2}, {WS_Q}")
    a(f"s_mov_b32 s{sT3}, {WS_KV}")
    a(f"s_cselect_b32 s{sB0}, s{sT2}, s{sT3}")
    a(f"s_mul_i32 s{sT4}, s{sT4}, s{sTT}")
    a(f"s_add_u32 s{sB0}, s{sB0}, s{sT4}")
    a(f"s_cmp_eq_u32 s{sKind}, 2")
    a(f"s_movk_i32 s{sT2}, 304")
    a(f"s_movk_i32 s{sT3}, 288")
    a(f"s_cselect_b32 s{sCS}, s{sT2}, s{sT3}")
    a(f"s_movk_i32 s{sT2}, 1152")
    a(f"s_cselect_b32 s{sT2}, s{sT2}, 0")
    a(f"s_add_u32 s{sB0}, s{sB0}, s{sT2}")
    a(f"s_lshl_b32 s{sT2}, s{sCS}, 1")
    a(f"s_add_u32 s{sB1}, s{sB0}, s{sT2}")
    a(f"s_mul_i32 s{sT2}, s{sJ}, 192")
    a(f"s_movk_i32 s{sT3}, 3641")
    a(f"v_mul_u32_u24 v18, s{sCS}, v13")
    for u in range(6):
        a(f"s_add_u32 s{sT4}, s{sT2}, {32*u}")
        a(f"v_add_u32 v16, s{sT4}, v12")
        a(f"v_mul_u32_u24 v17, s{sT3}, v16")
        a(f"v_lshrrev_b32 v17, 16, v17")
        a(f"v_mul_u32_u24 v19, 18, v17")
        a(f"v_sub_u32 v16, v16, v19")
        a(f"v_mul_lo_u32 v17, v17, s{sHS}")
        a(f"v_lshl_add_u32 v16, v16, 4, v18")
        a(f"v_add_u32 v{vEA+u}, v16, v17") if u < 2 else a(f"v_add_u32 v{vL+u}, v16, v17")
    for u in range(2, 6):
        a(f"v_mov_b32 v{vEA+u}, v{vL+u}")
    a("s_waitcnt lgkmcnt(0)")
    compute_main(a, "w")
    a(f"s_cmp_lg_u32 s{sKind}, 0")
    a("s_cbranch_scc1 k1_w_noscale")
    a(f"s_mov_b32 s{sT0}, {f32(QSCALE)}")
    for r in range(96):
        a(f"v_mul_f32 v{vAC+r}, s{sT0}, v{vAC+r}")
    a.label("k1_w_noscale")
    for u in range(6):
        P = vPK + 8 * u
        for j in range(8):
            a(f"v_cvt_pk_bf16_f32 v{P+j}, v{vAC+16*u+2*j}, v{vAC+16*u+2*j+1}")
        a(f"buffer_store_dwordx4 {vr(P,4)}, v{vEA+u}, {sr(S_WS,4)}, s{sB0} offen")
        a(f"buffer_store_dwordx4 {vr(P+4,4)}, v{vEA+u}, {sr(S_WS,4)}, s{sB1} offen")
    a(f"s_cmp_lg_u32 s{sKind}, 2")
    a("s_cbranch_scc1 k1_fin")
    a(f"s_mul_i32 s{sT0}, s{sJ}, 11")
    a(f"s_min_u32 s{sT1}, s{sJ}, 1")
    a(f"s_sub_u32 s{sT0}, s{sT0}, s{sT1}")
    a("v_lshrrev_b32 v2, 2, v1")
    a("v_cmp_gt_u32 vcc, 11, v2")
    a(f"v_add_u32 v2, s{sT0}, v2")
    a(f"v_mul_lo_u32 v2, v2, s{sHS}")
    a("v_and_b32 v3, 3, v1")
    a("v_mul_u32_u24 v3, 304, v3")
    a("v_add3_u32 v2, v2, v3, 0")
    for i in range(4):
        a(f"v_mov_b32 v{4+i}, 0x3f803f80")
    a("s_and_saveexec_b64 s[30:31], vcc")
    a(f"buffer_store_dwordx4 v[4:7], v2, {sr(S_WS,4)}, s{sB0} offen offset:288")
    a("s_branch k1_fin")

def compute_b(a):
    a("v_and_b32 v12, 31, v1")
    a("v_lshrrev_b32 v13, 5, v1")
    a(f"s_sub_u32 s{sT0}, s{sCT}, 9")
    sC3, sTT = 46, 47
    a(f"s_mul_i32 s{sC3}, s{sT0}, 3")
    a(f"s_mul_i32 s{sT0}, s{sT0}, 192")
    a(f"v_lshl_add_u32 v14, v12, 1, s{sT0}")
    a("s_waitcnt lgkmcnt(0)")
    for g in range(3):
        a(f"buffer_load_ushort v{vPK+3*g}, v14, {sr(S_A,4)}, 0 offen offset:{64*g}")
        a(f"buffer_load_ushort v{vPK+3*g+1}, v14, {sr(S_B,4)}, 0 offen offset:{64*g}")
        a(f"buffer_load_ushort v{vPK+3*g+2}, v14, {sr(S_C,4)}, 0 offen offset:{64*g}")
    a("v_bfe_u32 v14, v12, 2, 1")
    a("v_lshlrev_b32 v14, 4, v14")
    a("v_lshrrev_b32 v15, 3, v12")
    a("v_lshl_add_u32 v14, v15, 2, v14")
    a("v_and_b32 v15, 3, v12")
    a("v_add_u32 v14, v14, v15")
    a(f"s_lshl_b32 s{sT0}, s{sW}, 12")
    a(f"v_lshl_add_u32 v15, v14, 7, s{sT0}")
    a("v_bfe_u32 v14, v14, 1, 3")
    a("v_xor_b32 v14, v14, v13")
    for s in range(4):
        a(f"v_xor_b32 v16, {2*s}, v14")
        a(f"v_lshl_add_u32 v{vXA+s}, v16, 4, v15")
    a("v_bfe_u32 v14, v12, 1, 3")
    a("v_xor_b32 v14, v14, v13")
    a("v_lshlrev_b32 v15, 7, v12")
    a(f"v_add_u32 v15, {WOFF}, v15")
    for s in range(4):
        a(f"v_xor_b32 v16, {2*s}, v14")
        a(f"v_lshl_add_u32 v{vWA+s}, v16, 4, v15")
    a(f"s_lshl_b32 s{sTT}, s{sRB}, 2")
    a(f"s_add_u32 s{sTT}, s{sTT}, s{sW}")
    a("s_waitcnt vmcnt(0)")
    for g in range(3):
        lre, lim, ldt = vPK + 3 * g, vPK + 3 * g + 1, vPK + 3 * g + 2
        lam_base(a, lre, lim, ldt)
        B = vL + 6 * g
        lam_pow(a, B, B + 1, lre, lim, 1.0, ldt)
        a(f"v_sub_f32 v{B+2}, 0, v{B+1}")
        lam_pow(a, B + 3, B + 4, lre, lim, 16.0, ldt)
        a(f"v_sub_f32 v{B+5}, 0, v{B+4}")
    a(f"v_mov_b32 v{vEA}, v12")
    a(f"v_mov_b32 v{vEA+1}, v13")
    compute_main(a, "b")
    vN, vHH = vEA, vEA + 1
    a(f"s_mul_i32 s{sT0}, s{sTT}, 18")
    a(f"s_add_u32 s{sT0}, s{sT0}, s{sC3}")
    a(f"s_lshl_b32 s{sT0}, s{sT0}, 12")
    a(f"s_add_u32 s{sT0}, s{sT0}, {WS_U}")
    a("v_lshlrev_b32 v2, 4, v1")
    for g in range(3):
        R, I = vAC + 32 * g, vAC + 32 * g + 16
        P = vPK + 16 * g
        for r in range(16):
            a(f"v_cvt_pk_bf16_f32 v{P+r}, v{R+r}, v{I+r}")
            if r % 4 == 3:
                a(f"buffer_store_dwordx4 {vr(P+r-3,4)}, v2, {sr(S_WS,4)}, s{sT0} offen offset:{(r//4)*1024}")
        if g < 2: a(f"s_add_u32 s{sT0}, s{sT0}, 4096")
    for r in range(1, 16):
        for g in range(3):
            R, I, B = vAC + 32 * g, vAC + 32 * g + 16, vL + 6 * g
            a(f"v_fmac_f32 v{R+r}, v{B}, v{R+r-1}")
            a(f"v_fmac_f32 v{I+r}, v{B}, v{I+r-1}")
        for g in range(3):
            R, I, B = vAC + 32 * g, vAC + 32 * g + 16, vL + 6 * g
            a(f"v_fmac_f32 v{R+r}, v{B+2}, v{I+r-1}")
            a(f"v_fmac_f32 v{I+r}, v{B+1}, v{R+r-1}")
    EX = SLOT
    a(f"v_lshlrev_b32 v3, 3, v{vN}")
    a(f"s_mul_i32 s{sT1}, s{sW}, {2*768}")
    a(f"v_mul_u32_u24 v4, 768, v{vHH}")
    a(f"v_add3_u32 v4, v4, v3, s{sT1}")
    for g in range(3):
        R, I = vAC + 32 * g, vAC + 32 * g + 16
        a(f"v_mov_b32 v{16+2*g}, v{R+15}")
        a(f"v_mov_b32 v{17+2*g}, v{I+15}")
        a(f"ds_write_b64 v4, {vr(16+2*g,2)} offset:{EX + g*256}")
    a("s_waitcnt lgkmcnt(0)")
    a("s_barrier")
    ER = 24
    for s in range(7):
        for g in range(3):
            a(f"ds_read_b64 {vr(ER+6*s+2*g,2)}, v3 offset:{EX + s*768 + g*256}")
    PR = vAC
    for g in range(3):
        a(f"v_mov_b32 v{PR+2*g}, 0")
        a(f"v_mov_b32 v{PR+2*g+1}, 0")
    a(f"s_lshl_b32 s{sT1}, s{sW}, 1")
    a(f"v_add_u32 v5, s{sT1}, v{vHH}")
    a("s_waitcnt lgkmcnt(0)")
    def horner(er, dst, tmp):
        for g in range(3):
            B = vL + 6 * g
            a(f"v_fma_f32 v{tmp+2*g}, v{B+3}, v{PR+2*g}, v{er+2*g}")
            a(f"v_fma_f32 v{tmp+2*g+1}, v{B+3}, v{PR+2*g+1}, v{er+2*g+1}")
        for g in range(3):
            B = vL + 6 * g
            a(f"v_fmac_f32 v{tmp+2*g}, v{B+5}, v{PR+2*g+1}")
            a(f"v_fmac_f32 v{tmp+2*g+1}, v{B+4}, v{PR+2*g}")
        if dst != tmp:
            for i in range(6):
                a(f"v_mov_b32 v{dst+i}, v{tmp+i}")
    for s in range(7):
        a(f"v_cmpx_lt_u32 vcc, {s}, v5")
        a("s_cbranch_execz k1_b_pdone")
        horner(ER + 6 * s, PR, PR + 8)
    a.label("k1_b_pdone")
    a("s_mov_b64 exec, -1")
    a(f"s_mul_i32 s{sT0}, s{sTT}, {2*576*8}")
    a(f"s_lshl_b32 s{sT1}, s{sC3}, 8")
    a(f"s_add_u32 s{sT0}, s{sT0}, s{sT1}")
    a(f"s_add_u32 s{sT0}, s{sT0}, {WS_P}")
    a(f"v_mul_u32_u24 v4, {576*8}, v{vHH}")
    a("v_add_u32 v4, v4, v3")
    for g in range(3):
        a(f"buffer_store_dwordx2 {vr(PR+2*g,2)}, v4, {sr(S_WS,4)}, s{sT0} offen offset:{g*256}")
    a(f"s_cmp_lg_u32 s{sW}, 3")
    a("s_cbranch_scc1 k1_fin")
    horner(16, PR + 8, PR + 8)
    a(f"s_mul_i32 s{sT0}, s{sRB}, {576*8}")
    a(f"s_add_u32 s{sT0}, s{sT0}, s{sT1}")
    a(f"s_add_u32 s{sT0}, s{sT0}, {WS_E}")
    a("s_mov_b32 exec_lo, 0")
    for g in range(3):
        a(f"buffer_store_dwordx2 {vr(PR+8+2*g,2)}, v3, {sr(S_WS,4)}, s{sT0} offen offset:{g*256}")
    a("s_branch k1_fin")

def aux(a):
    S_CRE, S_CIM, S_WO, S_GW = 48, 52, 56, 60
    sJ = 64
    srd(a, S_CRE, KA_CRE, 576 * 576 * 2)
    srd(a, S_CIM, KA_CIM, 576 * 576 * 2)
    srd(a, S_WO, KA_WO, 576 * 576 * 2)
    srd(a, S_GW, KA_GW, 576 * 2)
    COEF = 576 * 128
    a("v_lshlrev_b32 v2, 1, v0")
    a("s_waitcnt lgkmcnt(0)")
    for rnd in range(2):
        for i, d in enumerate((S_A, S_B, S_C)):
            a(f"buffer_load_ushort v{10+3*rnd+i}, v2, {sr(d,4)}, 0 offen offset:{1024*rnd}")
    a(f"s_cmp_ge_u32 s{sRB}, 9")
    a("s_cbranch_scc1 k1_aux_nowo")
    a("v_lshrrev_b32 v3, 3, v1")
    a(f"s_lshl_b32 s{sT0}, s{sW}, 3")
    a(f"v_add_u32 v3, s{sT0}, v3")
    a("v_mul_u32_u24 v3, 1152, v3")
    a("v_and_b32 v4, 7, v1")
    a("v_lshl_add_u32 v3, v4, 4, v3")
    a(f"s_lshl_b32 s{sT1}, s{sRB}, 7")
    a(f"s_lshl_b32 s{sT2}, s{sW}, 10")
    for i in range(9):
        a(f"s_add_u32 m0, s{sT2}, {i*8192}")
        a(f"buffer_load_dwordx4 v3, {sr(S_WO,4)}, s{sT1} offen lds")
        if i < 8: a(f"s_add_u32 s{sT1}, s{sT1}, {64*1152}")
    a.label("k1_aux_nowo")
    GX, GW_ = 100, 60
    a("v_lshrrev_b32 v3, 3, v1")
    a(f"s_lshl_b32 s{sT0}, s{sRB}, 7")
    a(f"s_lshl_b32 s{sT1}, s{sW}, 4")
    a(f"s_add_u32 s{sT0}, s{sT0}, s{sT1}")
    a(f"v_add_u32 v5, s{sT0}, v3")
    a("v_and_b32 v4, 7, v1")
    a("v_lshlrev_b32 v4, 4, v4")
    a("v_mul_u32_u24 v3, 1152, v5")
    a("v_add_u32 v3, v3, v4")
    a(f"s_movk_i32 s{sT2}, {8*1152}")
    for i in range(9):
        a(f"buffer_load_dwordx4 {vr(GW_+4*i,4)}, v4, {sr(S_GW,4)}, 0 offen offset:{128*i}")
    for ps in range(2):
        for i in range(9):
            a(f"buffer_load_dwordx4 {vr(GX+36*ps+4*i,4)}, v3, {sr(S_X,4)}, {'0' if ps == 0 else 's%d' % sT2} offen offset:{128*i}")
    CR, CI = 20, 36
    def cjob_addr():
        a(f"s_mul_i32 s{sT0}, s{sJ}, 7282")
        a(f"s_lshr_b32 s{sT0}, s{sT0}, 16")
        a(f"s_mul_i32 s{sT1}, s{sT0}, 9")
        a(f"s_sub_u32 s{sT1}, s{sJ}, s{sT1}")
        a(f"s_mul_i32 s{sT2}, s{sT0}, {32*1152}")
        a(f"s_lshl_b32 s{sT3}, s{sT1}, 7")
        a(f"s_add_u32 s{sT2}, s{sT2}, s{sT3}")
        a("v_and_b32 v6, 31, v1")
        a("v_mul_u32_u24 v6, 1152, v6")
        a("v_lshrrev_b32 v7, 5, v1")
        a("v_lshl_add_u32 v6, v7, 6, v6")
        for q in range(4):
            a(f"buffer_load_dwordx4 {vr(CR+4*q,4)}, v6, {sr(S_CRE,4)}, s{sT2} offen offset:{16*q}")
            a(f"buffer_load_dwordx4 {vr(CI+4*q,4)}, v6, {sr(S_CIM,4)}, s{sT2} offen offset:{16*q}")
    a(f"s_lshl_b32 s{sJ}, s{sRB}, 3")
    a(f"s_add_u32 s{sJ}, s{sJ}, s{sW}")
    cjob_addr()
    stamp(a, 1)
    a("s_waitcnt vmcnt(35)")
    sK = 65
    a(f"s_lshl_b32 s{sT0}, s{sRB}, 4")
    a(f"s_cmp_eq_u32 s{sRB}, 8")
    a(f"s_cselect_b32 s{sT0}, 1, s{sT0}")
    a(f"s_cmp_eq_u32 s{sRB}, 9")
    a(f"s_cselect_b32 s{sT0}, 0x80, s{sT0}")
    a(f"v_cvt_f32_u32 v8, s{sT0}")
    a(f"v_readfirstlane_b32 s{sK}, v8")
    a(f"s_mul_i32 s{sT4}, s{sRB}, {576*8}")
    a(f"s_add_u32 s{sT4}, s{sT4}, {WS_T}")
    a("v_lshlrev_b32 v9, 3, v0")
    for rnd in range(2):
        lre, lim, ldt = 10 + 3 * rnd, 11 + 3 * rnd, 12 + 3 * rnd
        if rnd == 1:
            a(f"s_cmp_lg_u32 s{sW}, 0")
            a("s_cbranch_scc1 k1_aux_coefdone")
        a(f"v_lshlrev_b32 v16, 16, v{lre}")
        a(f"v_lshlrev_b32 v17, 16, v{lim}")
        lam_base(a, lre, lim, ldt)
        lam_pow(a, 18, 19, lre, lim, 1.0, ldt)
        a("v_add_f32 v18, -1.0, v18")
        a("v_mul_f32 v2, v16, v16")
        a("v_fmac_f32 v2, v17, v17")
        a("v_rcp_f32 v2, v2")
        a("v_mul_f32 v52, v18, v16")
        a("v_fmac_f32 v52, v19, v17")
        a("v_mul_f32 v53, v19, v16")
        a("v_fma_f32 v53, -v18, v17, v53")
        a("v_add_f32 v2, v2, v2")
        a("v_mul_f32 v52, v52, v2")
        a("v_mul_f32 v53, v53, v2")
        a(f"ds_write_b64 v9, v[52:53] offset:{COEF - 65536 + 4096*rnd}" if False else "")
        a(f"v_add_u32 v54, {COEF + 4096*rnd}, v9")
        a("ds_write_b64 v54, v[52:53]")
        a(f"s_cmp_ge_u32 s{sRB}, 10")
        a(f"s_cbranch_scc1 k1_aux_notab{rnd}")
        lam_pow(a, 56, 57, lre, lim, f"s{sK}", ldt)
        if rnd == 1: a(f"s_add_u32 s{sT4}, s{sT4}, 4096")
        a(f"buffer_store_dwordx2 v[56:57], v9, {sr(S_WS,4)}, s{sT4} offen")
        a.label(f"k1_aux_notab{rnd}")
    a.label("k1_aux_coefdone")
    a("s_waitcnt vmcnt(0)")
    stamp(a, 2)
    for ps in range(2):
        acc = 56 + ps
        a(f"v_mov_b32 v{acc}, 0")
        for i in range(36):
            a(f"v_dot2_f32_bf16 v{acc}, v{GX+36*ps+i}, v{GW_+i}, v{acc}")
    for ps in range(2):
        acc = 56 + ps
        a(f"v_add_f32_dpp v{acc}, v{acc}, v{acc} quad_perm:[1,0,3,2] row_mask:0xf bank_mask:0xf")
        a(f"v_add_f32_dpp v{acc}, v{acc}, v{acc} quad_perm:[2,3,0,1] row_mask:0xf bank_mask:0xf")
        a(f"v_add_f32_dpp v{acc}, v{acc}, v{acc} row_half_mirror row_mask:0xf bank_mask:0xf")
        a(f"v_mul_f32 v{acc}, {f32(-LOG2E)}, v{acc}")
        a(f"v_exp_f32 v{acc}, v{acc}")
        a(f"v_add_f32 v{acc}, 1.0, v{acc}")
        a(f"v_rcp_f32 v{acc}, v{acc}")
    a("v_lshlrev_b32 v5, 2, v5")
    a(f"s_mov_b32 s{sT0}, {WS_G}")
    a("s_mov_b32 exec_lo, 0x01010101")
    a("s_mov_b32 exec_hi, 0x01010101")
    a(f"buffer_store_dword v56, v5, {sr(S_WS,4)}, s{sT0} offen")
    a(f"buffer_store_dword v57, v5, {sr(S_WS,4)}, s{sT0} offen offset:32")
    a("s_mov_b64 exec, -1")
    a("s_waitcnt lgkmcnt(0)")
    a("s_barrier")
    stamp(a, 3)
    a.label("k1_aux_cjob")
    a(f"s_mul_i32 s{sT0}, s{sJ}, 7282")
    a(f"s_lshr_b32 s{sT0}, s{sT0}, 16")
    a(f"s_mul_i32 s{sT1}, s{sT0}, 9")
    a(f"s_sub_u32 s{sT1}, s{sJ}, s{sT1}")
    a("v_lshrrev_b32 v7, 5, v1")
    a(f"s_lshl_b32 s{sT2}, s{sT1}, 9")
    a(f"s_add_u32 s{sT2}, s{sT2}, {COEF}")
    a(f"v_lshl_add_u32 v7, v7, 8, s{sT2}")
    CF = 60
    for i in range(16):
        a(f"ds_read_b128 {vr(CF+4*i,4)}, v7 offset:{16*i}")
    XO, YO = 128, 144
    T = 160
    a("s_waitcnt vmcnt(0) lgkmcnt(0)")
    for q in range(4):
        for eo in range(2):
            for dw in range(2):
                src = 2 * eo + dw
                e0 = 8 * q + 2 * src
                a(f"v_lshlrev_b32 v{T}, 16, v{CR+4*q+src}")
                a(f"v_and_b32 v{T+1}, 0xffff0000, v{CR+4*q+src}")
                a(f"v_lshlrev_b32 v{T+2}, 16, v{CI+4*q+src}")
                a(f"v_and_b32 v{T+3}, 0xffff0000, v{CI+4*q+src}")
                for e in range(2):
                    cr, ci = CF + 2 * (e0 + e), CF + 2 * (e0 + e) + 1
                    a(f"v_mul_f32 v{T+4+e}, v{cr}, v{T+e}")
                    a(f"v_fma_f32 v{T+4+e}, -v{ci}, v{T+2+e}, v{T+4+e}")
                    a(f"v_mul_f32 v{T+6+e}, v{ci}, v{T+e}")
                    a(f"v_fma_f32 v{T+6+e}, -v{cr}, v{T+2+e}, -v{T+6+e}")
                base = YO if eo else XO
                m, pos = q >> 1, 2 * (q & 1) + dw
                a(f"v_cvt_pk_bf16_f32 v{base+0*8+4*m+pos}, v{T+4}, v{T+5}")
                a(f"v_cvt_pk_bf16_f32 v{base+1*8+4*m+pos}, v{T+6}, v{T+7}")
    for i in range(16):
        a(f"v_permlane32_swap_b32 v{XO+i}, v{YO+i}")
    a(f"s_mul_i32 s{sT2}, s{sT0}, {NSTEP}")
    a(f"s_lshl_b32 s{sT3}, s{sT1}, 3")
    a(f"s_add_u32 s{sT2}, s{sT2}, s{sT3}")
    a(f"s_add_u32 s{sT2}, s{sT2}, 36")
    a(f"s_lshl_b32 s{sT2}, s{sT2}, 10")
    a(f"s_add_u32 s{sT2}, s{sT2}, {WS_BF}")
    a(f"s_add_u32 s{sT3}, s{sT2}, 4096")
    a("v_lshlrev_b32 v6, 4, v1")
    for i in range(4):
        a(f"buffer_store_dwordx4 {vr(XO+4*i,4)}, v6, {sr(S_WS,4)}, s{sT2} offen offset:{1024*i}")
        a(f"buffer_store_dwordx4 {vr(YO+4*i,4)}, v6, {sr(S_WS,4)}, s{sT3} offen offset:{1024*i}")
    a(f"s_cmp_lt_u32 s{sRB}, 9")
    a("s_cbranch_scc1 k1_aux_wo")
    a(f"s_cmp_ge_u32 s{sJ}, 128")
    a("s_cbranch_scc1 k1_fin")
    a(f"s_add_u32 s{sJ}, s{sJ}, {128 - 72}")
    a(f"s_cmp_ge_u32 s{sJ}, 162")
    a("s_cbranch_scc1 k1_fin")
    cjob_addr()
    a("s_branch k1_aux_cjob")
    a.label("k1_aux_wo")
    a("v_bfe_u32 v2, v1, 2, 2")
    a("v_lshrrev_b32 v3, 5, v1")
    a("v_bfe_u32 v4, v1, 4, 1")
    a("v_lshlrev_b32 v4, 5, v4")
    a("v_and_b32 v5, 3, v1")
    a("v_lshl_add_u32 v4, v5, 3, v4")
    a("v_lshl_add_u32 v5, v3, 2, v2")
    a("v_lshl_add_u32 v5, v5, 7, v4")
    a(f"s_mul_i32 s{sT0}, s{sW}, {4*18*128}")
    a(f"v_add_u32 v5, s{sT0}, v5")
    a("v_lshrrev_b32 v6, 1, v2")
    a("v_lshl_add_u32 v6, v3, 2, v6")
    a("v_mul_u32_u24 v6, 18, v6")
    a("v_and_b32 v7, 1, v2")
    a("v_add3_u32 v6, v6, v7, 16")
    a("v_lshl_add_u32 v6, v6, 7, v4")
    a(f"s_and_b32 s{sT1}, s{sW}, 3")
    a(f"s_lshr_b32 s{sT2}, s{sW}, 2")
    a(f"s_mul_i32 s{sT0}, s{sT1}, {8*18*128}")
    a(f"s_lshl_b32 s{sT3}, s{sT2}, 6")
    a(f"s_add_u32 s{sT0}, s{sT0}, s{sT3}")
    a(f"v_add_u32 v6, s{sT0}, v6")
    FR = 20
    for i in range(8):
        hd, ntl = i & 3, i >> 2
        off = hd * 18 * 128 + ntl * 64
        a(f"ds_read_b64_tr_b16 {vr(FR+4*i,2)}, v5 offset:{off}")
        a(f"ds_read_b64_tr_b16 {vr(FR+4*i+2,2)}, v5 offset:{off + 8*128}")
    a(f"ds_read_b64_tr_b16 {vr(FR+32,2)}, v6")
    a(f"ds_read_b64_tr_b16 {vr(FR+34,2)}, v6 offset:{36*128}")
    a("v_lshlrev_b32 v7, 4, v1")
    a(f"s_mul_i32 s{sT0}, s{sRB}, {2*NSTEP*1024}")
    a(f"s_add_u32 s{sT0}, s{sT0}, {WS_BF}")
    a(f"s_lshl_b32 s{sT3}, s{sW}, 12")
    a(f"s_add_u32 s{sT3}, s{sT3}, s{sT0}")
    a(f"s_add_u32 s{sT4}, s{sT3}, {NSTEP*1024}")
    a(f"s_mul_i32 s{sT2}, s{sT2}, {NSTEP*1024}")
    a(f"s_add_u32 s{sT0}, s{sT0}, s{sT2}")
    a(f"s_lshl_b32 s{sT1}, s{sT1}, 10")
    a(f"s_add_u32 s{sT0}, s{sT0}, s{sT1}")
    a(f"s_add_u32 s{sT0}, s{sT0}, {32*1024}")
    a("s_waitcnt lgkmcnt(0)")
    for i in range(8):
        a(f"buffer_store_dwordx4 {vr(FR+4*i,4)}, v7, {sr(S_WS,4)}, s{sT3 if i < 4 else sT4} offen offset:{1024*(i&3)}")
    a(f"buffer_store_dwordx4 {vr(FR+32,4)}, v7, {sr(S_WS,4)}, s{sT0} offen")

def gen_k1():
    a = Asm()
    a("s_cmp_ge_u32 s2, 256")
    a("s_cbranch_scc1 k1_end")
    stamp_start(a)
    srd(a, S_X, KA_X, S * D * 2)
    srd(a, S_WS, KA_WS, WS_SIZE)
    srd(a, S_A, KA_LRE, D * 2)
    srd(a, S_B, KA_LIM, D * 2)
    srd(a, S_C, KA_LOGDT, D * 2)
    a("v_lshrrev_b32 v2, 6, v0")
    a("v_and_b32 v1, 63, v0")
    a(f"v_readfirstlane_b32 s{sW}, v2")
    a(f"s_and_b32 s{sT0}, s2, 3")
    a(f"s_bfe_u32 s{sT1}, s2, 0x20003")
    a(f"s_lshl_b32 s{sRB}, s{sT0}, 2")
    a(f"s_add_u32 s{sRB}, s{sRB}, s{sT1}")
    a(f"s_bfe_u32 s{sT0}, s2, 0x10002")
    a(f"s_lshr_b32 s{sT1}, s2, 5")
    a(f"s_lshl_b32 s{sCT}, s{sT0}, 3")
    a(f"s_add_u32 s{sCT}, s{sCT}, s{sT1}")
    a(f"s_cmp_eq_u32 s{sCT}, 15")
    a("s_cbranch_scc1 k1_aux")
    a(f"s_cmp_ge_u32 s{sCT}, 9")
    a("s_cbranch_scc1 k1_b")
    srd(a, S_W, KA_WQKV, D * 3 * D * 2)
    a(f"s_cmp_ge_u32 s{sW}, 4")
    a("s_cbranch_scc1 k1_w_ld")
    compute_w(a)
    a.label("k1_w_ld")
    loader(a, "w")
    a.label("k1_b")
    srd(a, S_W, KA_BRE, D * D * 2)
    srd(a, S_W2, KA_BIM, D * D * 2)
    a(f"s_cmp_ge_u32 s{sW}, 4")
    a("s_cbranch_scc1 k1_b_ld")
    compute_b(a)
    a.label("k1_b_ld")
    loader(a, "b")
    a.label("k1_aux")
    aux(a)
    a.label("k1_fin")
    fin(a)
    a.label("k1_end")
    a("s_endpgm")
    return a
```

```python
from common import *
import common

S_WS = 8
sHead, sQB, sW, sUnit, sTT, sCG, sB = 3, 4, 5, 6, 12, 13, 14
sT0, sT1, sT2, sT3, sT4 = 16, 17, 18, 19, 20
sIt, sPass = 21, 22
LQ = 64 * KV_TS
K2_LDS = LQ + 9 * 1024
U = 8
vLane16, vG, vKA, vVA = 2, 3, 4, 5
vQ, vQr = 8, 12
vK = [14, 20]
vV = [28, 36]
vP = 44
vS = [52, 68]
vO = 84
vNM = 100
sU, sP_, sLam, sL128, sL16, sG1, sE, sH, sBd, sA, sD = 8, 24, 26, 28, 30, 122, 32, 64, 96, 104, 32

def pk_step(a, dst, lam, h, u):
    a(f"v_pk_fma_f32 {vr(dst,2)}, {vr(lam,2)}, {vr(h,2)}, {vr(u,2)} op_sel:[0,0,0] op_sel_hi:[0,1,1]")
    a(f"v_pk_fma_f32 {vr(dst,2)}, {vr(lam,2)}, {vr(h,2)}, {vr(dst,2)} op_sel:[1,1,0] op_sel_hi:[1,0,1] neg_lo:[1,0,0]")

def scan_loads(a):
    a(f"s_mul_i32 s{sTT}, s{sUnit}, 3641")
    a(f"s_lshr_b32 s{sTT}, s{sTT}, 16")
    a(f"s_mul_i32 s{sT0}, s{sTT}, 18")
    a(f"s_sub_u32 s{sCG}, s{sUnit}, s{sT0}")
    a(f"s_lshr_b32 s{sB}, s{sTT}, 2")
    a(f"s_lshl_b32 s{sT0}, s{sUnit}, 12")
    a(f"s_add_u32 s{sT0}, s{sT0}, {WS_U}")
    for q in range(4):
        a(f"buffer_load_dwordx4 {vr(sU+4*q,4)}, v{vLane16}, {sr(S_WS,4)}, s{sT0} offen offset:{1024*q}")
    a("v_and_b32 v60, 31, v1")
    a("v_lshlrev_b32 v61, 3, v60")
    a("v_lshrrev_b32 v62, 5, v1")
    a(f"v_mul_u32_u24 v62, {576*8}, v62")
    a("v_add_u32 v62, v62, v61")
    a(f"s_lshl_b32 s{sT1}, s{sCG}, 8")
    a(f"s_mul_i32 s{sT0}, s{sTT}, {2*576*8}")
    a(f"s_add_u32 s{sT0}, s{sT0}, s{sT1}")
    a(f"s_add_u32 s{sT0}, s{sT0}, {WS_P}")
    a(f"buffer_load_dwordx2 {vr(sP_,2)}, v62, {sr(S_WS,4)}, s{sT0} offen")
    a(f"s_and_b32 s{sT0}, s{sTT}, 3")
    a(f"s_mul_i32 s{sT0}, s{sT0}, {2*576*8}")
    a(f"s_add_u32 s{sT0}, s{sT0}, s{sT1}")
    a(f"s_add_u32 s{sT0}, s{sT0}, {WS_T}")
    a(f"buffer_load_dwordx2 {vr(sL16,2)}, v62, {sr(S_WS,4)}, s{sT0} offen")
    a(f"s_add_u32 s{sT0}, s{sT1}, {WS_T + 8*576*8}")
    a(f"buffer_load_dwordx2 {vr(sLam,2)}, v61, {sr(S_WS,4)}, s{sT0} offen")
    a(f"s_add_u32 s{sT0}, s{sT1}, {WS_T + 9*576*8}")
    a(f"buffer_load_dwordx2 {vr(sL128,2)}, v61, {sr(S_WS,4)}, s{sT0} offen")
    a(f"s_lshl_b32 s{sT0}, s{sTT}, 7")
    a(f"s_add_u32 s{sT0}, s{sT0}, {WS_G}")
    a("v_lshlrev_b32 v60, 2, v60")
    a(f"buffer_load_dword v{sG1}, v60, {sr(S_WS,4)}, s{sT0} offen")
    a(f"s_add_u32 s{sT0}, s{sT1}, {WS_E}")
    for i in range(15):
        a(f"s_cmp_le_u32 s{sB}, {i}")
        a("s_cbranch_scc1 k2_eld_done")
        a(f"buffer_load_dwordx2 {vr(sE+2*i,2)}, v61, {sr(S_WS,4)}, s{sT0} offen")
        if i < 14: a(f"s_add_u32 s{sT0}, s{sT0}, {576*8}")
    a.label("k2_eld_done")

def scan_compute(a):
    C = [62, 120]
    a(f"v_mov_b32 v{C[0]}, 0")
    a(f"v_mov_b32 v{C[0]+1}, 0")
    for i in range(15):
        a(f"s_cmp_le_u32 s{sB}, {i}")
        a("s_cbranch_scc1 k2_horner_done")
        pk_step(a, C[1], sL128, C[0], sE + 2 * i)
        a(f"v_pk_mov_b32 {vr(C[0],2)}, {vr(C[1],2)}, {vr(C[1],2)} op_sel:[0,1]")
    a.label("k2_horner_done")
    pk_step(a, sP_, sL16, C[0], sP_)
    a(f"v_sub_f32 v{sG1}, 1.0, v{sG1}")
    a(f"v_cvt_pk_bf16_f32 v{sG1}, v{sG1}, v{sG1}")
    a("v_and_b32 v7, 1, v1")
    a("v_cmp_eq_u32 vcc, 1, v7")
    a("v_mov_b32 v7, 0xffff")
    a("v_mov_b32 v60, 0xffff0000")
    a("v_cndmask_b32 v7, v7, v60, vcc")
    a(f"v_and_b32 v{sG1}, v{sG1}, v7")
    a("v_and_b32 v7, 31, v1")
    a("v_lshrrev_b32 v60, 5, v1")
    a("v_lshlrev_b32 v60, 4, v60")
    a("v_sub_u32 v7, v7, v60")
    a("v_lshrrev_b32 v7, 1, v7")
    for i in range(8):
        a(f"v_cmp_eq_u32 vcc, {i}, v7")
        a(f"v_cndmask_b32 v{sBd+i}, 0, v{sG1}, vcc")
    prev = sP_
    for r in range(16):
        a(f"v_lshlrev_b32 v{sH+2*r}, 16, v{sU+r}")
        a(f"v_and_b32 v{sH+2*r+1}, 0xffff0000, v{sU+r}")
    for r in range(16):
        pk_step(a, sH + 2 * r, sLam, prev, sH + 2 * r)
        prev = sH + 2 * r
        if r & 1:
            a(f"v_cvt_pk_bf16_f32 v{sA+r//2}, v{sH+2*r-2}, v{sH+2*r}")
            a(f"v_cvt_pk_bf16_f32 v{sA+8+r//2}, v{sH+2*r-1}, v{sH+2*r+1}")
    for part in range(2):
        a(f"v_mfma_f32_32x32x16_bf16 {vr(sD+16*part,16)}, {vr(sA+8*part,4)}, {vr(sBd,4)}, 0")
    for part in range(2):
        a(f"v_mfma_f32_32x32x16_bf16 {vr(sD+16*part,16)}, {vr(sA+8*part+4,4)}, {vr(sBd+4,4)}, {vr(sD+16*part,16)}")
    a(f"s_mul_i32 s{sT0}, s{sTT}, {NSTEP}")
    a(f"s_lshl_b32 s{sT1}, s{sCG}, 2")
    a(f"s_add_u32 s{sT0}, s{sT0}, s{sT1}")
    a(f"s_add_u32 s{sT0}, s{sT0}, 36")
    a(f"s_lshl_b32 s{sT0}, s{sT0}, 10")
    a(f"s_add_u32 s{sT0}, s{sT0}, {WS_AF}")
    for i in range(4):
        for j in range(4):
            a(f"v_cvt_pk_bf16_f32 v{sH+4*i+j}, v{sD+8*i+2*j}, v{sD+8*i+2*j+1}")
        a(f"buffer_store_dwordx4 {vr(sH+4*i,4)}, v{vLane16}, {sr(S_WS,4)}, s{sT0} offen offset:{1024*i}")

def kreads(a, buf, areg, off):
    a(f"ds_read_b64_tr_b16 {vr(buf,2)}, v{areg} offset:{off}")
    a(f"ds_read_b64_tr_b16 {vr(buf+2,2)}, v{areg} offset:{off+64}")
    a(f"ds_read_b64_tr_b16 {vr(buf+4,2)}, v{areg} offset:{off+256}")

def vreads(a, buf, off):
    a(f"ds_read_b128 {vr(buf,4)}, v{vVA} offset:{off}")
    a(f"ds_read_b128 {vr(buf+4,4)}, v{vVA} offset:{off+608}")

def addr_init(a):
    a("v_bfe_u32 v6, v1, 4, 1")
    a("v_and_b32 v7, 1, v1")
    a("v_lshl_add_u32 v6, v6, 1, v7")
    a("v_mul_u32_u24 v6, 288, v6")
    a("v_lshrrev_b32 v7, 5, v1")
    a("v_lshl_add_u32 v6, v7, 7, v6")
    a(f"v_mul_u32_u24 v{vVA}, 304, v7")
    a("v_bfe_u32 v7, v1, 2, 2")
    a("v_lshl_add_u32 v6, v7, 4, v6")
    a("v_bfe_u32 v7, v1, 1, 1")
    a(f"v_lshl_add_u32 v{vKA}, v7, 3, v6")
    a("v_and_b32 v7, 31, v1")
    a(f"v_lshl_add_u32 v{vVA}, v7, 4, v{vVA}")
    a(f"v_add_u32 v{vVA}, 1152, v{vVA}")

def gen_k2():
    a = Asm()
    a("s_cmp_ge_u32 s2, 256")
    a("s_cbranch_scc1 k2_end")
    stamp_start(a)
    srd(a, S_WS, KA_WS, WS_SIZE)
    a("v_lshrrev_b32 v2, 6, v0")
    a("v_and_b32 v1, 63, v0")
    a(f"v_readfirstlane_b32 s{sW}, v2")
    a(f"v_lshlrev_b32 v{vLane16}, 4, v1")
    a(f"s_and_b32 s{sHead}, s2, 31")
    a(f"s_lshr_b32 s{sQB}, s2, 5")
    a(f"s_lshl_b32 s{sUnit}, s2, 2")
    a(f"s_add_u32 s{sUnit}, s{sUnit}, s{sW}")
    a(f"s_lshr_b32 s{sT0}, s2, 1")
    a(f"s_add_u32 s{sT0}, s{sT0}, 1024")
    a(f"s_and_b32 s{sT1}, s2, 1")
    a(f"s_cmp_eq_u32 s{sT1}, 0")
    a(f"s_cselect_b32 s{sT0}, s{sT0}, 0x7fff")
    a(f"s_cmp_eq_u32 s{sW}, 4")
    a(f"s_cselect_b32 s{sT0}, s{sT0}, 0x7fff")
    a(f"s_cmp_lt_u32 s{sW}, 4")
    a(f"s_cselect_b32 s{sUnit}, s{sUnit}, s{sT0}")
    a("s_waitcnt lgkmcnt(0)")
    a(f"s_cmp_ge_u32 s{sUnit}, 1152")
    a("s_cbranch_scc1 k2_noscanld")
    scan_loads(a)
    a.label("k2_noscanld")
    a(f"s_lshl_b32 s{sT0}, s{sQB}, 10")
    a(f"s_lshl_b32 s{sT1}, s{sW}, 7")
    a(f"s_add_u32 s{sT0}, s{sT0}, s{sT1}")
    a(f"s_add_u32 s{sT0}, s{sT0}, {WS_G}")
    a("v_and_b32 v7, 31, v1")
    a("v_lshlrev_b32 v7, 2, v7")
    a(f"buffer_load_dword v{vG}, v7, {sr(S_WS,4)}, s{sT0} offen")
    a(f"s_mul_i32 s{sT0}, s{sHead}, {KV_HS}")
    a(f"s_add_u32 s{sT0}, s{sT0}, {WS_KV}")
    a(f"s_lshl_b32 s{sT1}, s{sW}, 10")
    a(f"s_add_u32 s{sT2}, s{sT0}, s{sT1}")
    def piece(i):
        a(f"s_add_u32 m0, s{sT1}, {i*8192}")
        a(f"buffer_load_dwordx4 v{vLane16}, {sr(S_WS,4)}, s{sT2} offen lds")
        a(f"s_add_u32 s{sT2}, s{sT2}, 8192")
    for i in range(3): piece(i)
    a(f"s_mul_i32 s{sT3}, s{sHead}, {Q_HS}")
    a(f"s_mul_i32 s{sT4}, s{sQB}, {8*Q_TS}")
    a(f"s_add_u32 s{sT3}, s{sT3}, s{sT4}")
    if WS_Q: a(f"s_add_u32 s{sT3}, s{sT3}, {WS_Q}")
    a(f"s_add_u32 s{sT4}, s{sT3}, s{sT1}")
    a(f"s_add_u32 m0, s{sT1}, {LQ}")
    a(f"buffer_load_dwordx4 v{vLane16}, {sr(S_WS,4)}, s{sT4} offen lds")
    a(f"s_add_u32 s{sT4}, s{sT3}, 8192")
    a(f"s_mov_b32 m0, {LQ + 8192}")
    a(f"buffer_load_dwordx4 v{vLane16}, {sr(S_WS,4)}, s{sT4} offen lds")
    for i in range(3, 18): piece(i)
    a(f"s_and_b32 s{sT1}, s{sT1}, 0xfff")
    a(f"s_add_u32 s{sT2}, s{sT0}, s{sT1}")
    a(f"s_add_u32 s{sT2}, s{sT2}, {18*8192}")
    a(f"s_add_u32 m0, s{sT1}, {18*8192}")
    a(f"buffer_load_dwordx4 v{vLane16}, {sr(S_WS,4)}, s{sT2} offen lds")
    addr_init(a)
    stamp(a, 1)
    a("s_waitcnt vmcnt(16)")
    a("s_barrier")
    stamp(a, 2)
    a(f"s_cmp_ge_u32 s{sUnit}, 1152")
    a("s_cbranch_scc1 k2_noscan")
    scan_compute(a)
    a.label("k2_noscan")
    stamp(a, 3)
    a(f"s_mul_i32 s{sT0}, s{sW}, {Q_TS}")
    a(f"s_add_u32 s{sT0}, s{sT0}, {LQ}")
    a(f"v_add_u32 v6, s{sT0}, v{vKA}")
    kreads(a, vQ, 6, 0)
    for r in range(16): a(f"v_mov_b32 v{vNM+r}, 0")
    a(f"s_mov_b32 s{sPass}, 0")
    a("s_waitcnt lgkmcnt(0)")
    a(f"v_mov_b32 v{vQr+1}, 0")
    a("s_mov_b32 exec_lo, 0")
    a(f"v_mov_b32 v{vQr}, 0")
    a("s_mov_b32 exec_lo, -1")
    a.label("k2_pass")
    kreads(a, vK[0], vKA, 0)
    kreads(a, vK[1], vKA, KV_TS)
    vreads(a, vV[0], 0)
    for r in range(16): a(f"v_mov_b32 v{vO+r}, 0")
    for r in range(4):
        a(f"v_mov_b32 v{vV[1]+4+r}, 0")
        a(f"v_mov_b32 v{vP+4+r}, 0")
    a(f"s_mov_b32 s{sIt}, 0")
    a("s_waitcnt lgkmcnt(5)")
    a(f"v_mfma_f32_32x32x16_bf16 {vr(vS[0],16)}, {vr(vK[0],4)}, {vr(vQ,4)}, {vr(vNM,16)}")
    a(f"v_mfma_f32_32x32x8_bf16 {vr(vS[0],16)}, {vr(vK[0]+4,2)}, {vr(vQr,2)}, {vr(vS[0],16)}")
    a(".p2align 3")
    a.label("k2_loop")
    for j in range(U):
        c, n = j & 1, (j + 1) & 1
        Sc, Sn = vS[c], vS[n]
        ex = lambda r: a(f"v_exp_f32 v{Sc+r}, v{Sc+r}")
        cv = lambda k: a(f"v_cvt_pk_bf16_f32 v{vP+k}, v{Sc+2*k}, v{Sc+2*k+1}")
        a("s_waitcnt lgkmcnt(0)")
        kreads(a, vK[c], vKA, (j + 2) * KV_TS)
        a(f"v_mfma_f32_32x32x16_bf16 {vr(vO,16)}, {vr(vV[n]+4,4)}, {vr(vP+4,4)}, {vr(vO,16)}")
        vreads(a, vV[n], (j + 1) * KV_TS)
        for r in range(5): ex(r)
        a(f"v_mfma_f32_32x32x16_bf16 {vr(Sn,16)}, {vr(vK[n],4)}, {vr(vQ,4)}, {vr(vNM,16)}")
        for r in range(5, 8): ex(r)
        for k in range(4): cv(k)
        a(f"v_mfma_f32_32x32x8_bf16 {vr(Sn,16)}, {vr(vK[n]+4,2)}, {vr(vQr,2)}, {vr(Sn,16)}")
        for r in range(8, 13): ex(r)
        a(f"v_mfma_f32_32x32x16_bf16 {vr(vO,16)}, {vr(vV[c],4)}, {vr(vP,4)}, {vr(vO,16)}")
        for r in range(13, 16): ex(r)
        for k in range(4, 8): cv(k)
    a(f"v_add_u32 v{vKA}, {U*KV_TS}, v{vKA}")
    a(f"v_add_u32 v{vVA}, {U*KV_TS}, v{vVA}")
    a(f"s_or_b32 s{sT0}, s{sIt}, s{sPass}")
    a(f"s_add_u32 s{sIt}, s{sIt}, 1")
    a(f"s_cmp_lg_u32 s{sT0}, 0")
    a("s_cbranch_scc1 k2_nobar")
    stamp(a, 4)
    a("s_waitcnt vmcnt(0)")
    a("s_barrier")
    stamp(a, 5)
    a.label("k2_nobar")
    a(f"s_cmp_lt_u32 s{sIt}, {64//U}")
    a("s_cbranch_scc1 k2_loop")
    a(f"v_mfma_f32_32x32x16_bf16 {vr(vO,16)}, {vr(vV[1]+4,4)}, {vr(vP+4,4)}, {vr(vO,16)}")
    a(f"v_add_u32 v{vKA}, {(-64*KV_TS) & 0xffffffff}, v{vKA}")
    a(f"v_add_u32 v{vVA}, {(-64*KV_TS) & 0xffffffff}, v{vVA}")
    a("s_waitcnt lgkmcnt(0)")
    stamp(a, 6)
    a(f"v_mov_b32 v6, v{vO+10}")
    a(f"v_mov_b32 v7, v{vO+10}")
    a("v_permlane32_swap_b32 v6, v7")
    a(f"s_cmp_lg_u32 s{sPass}, 0")
    a("s_cbranch_scc1 k2_fin")
    a("v_mov_b32 v7, 0")
    for r in range(8): a(f"v_fmac_f32 v7, 0, v{vO+r}")
    a("s_mov_b32 exec_hi, 0")
    for r in range(8, 10): a(f"v_fmac_f32 v7, 0, v{vO+r}")
    a("s_mov_b32 exec_hi, -1")
    a("v_add_f32 v7, v7, v6")
    a(f"s_mov_b32 s{sT0}, {f32(2.0**-16)}")
    a(f"s_mov_b32 s{sT1}, {f32(2.0**64)}")
    a(f"v_cmp_nle_f32 vcc, s{sT0}, v7")
    a(f"v_cmp_nge_f32 s[24:25], s{sT1}, v7")
    a("s_or_b64 vcc, vcc, s[24:25]")
    a("s_cbranch_vccz k2_fin")
    M = vP
    a(f"v_mov_b32 v{M}, 0xff800000")
    a(f"v_mov_b32 v6, v{vKA}")
    a(f"s_mov_b32 s{sIt}, 0")
    a.label("k2_max")
    kreads(a, vK[0], 6, 0)
    a(f"v_add_u32 v6, {KV_TS}, v6")
    a("s_waitcnt lgkmcnt(0)")
    a(f"v_mfma_f32_32x32x16_bf16 {vr(vS[0],16)}, {vr(vK[0],4)}, {vr(vQ,4)}, 0")
    a(f"v_mfma_f32_32x32x8_bf16 {vr(vS[0],16)}, {vr(vK[0]+4,2)}, {vr(vQr,2)}, {vr(vS[0],16)}")
    a(f"s_add_u32 s{sIt}, s{sIt}, 1")
    for k in range(8):
        a(f"v_max3_f32 v{M}, v{M}, v{vS[0]+2*k}, v{vS[0]+2*k+1}")
    a(f"s_cmp_lt_u32 s{sIt}, 64")
    a("s_cbranch_scc1 k2_max")
    a(f"v_mov_b32 v6, v{M}")
    a(f"v_permlane32_swap_b32 v6, v{M}")
    a(f"v_max_f32 v6, v6, v{M}")
    for r in range(16): a(f"v_sub_f32 v{vNM+r}, 0, v6")
    a(f"s_mov_b32 s{sPass}, 1")
    a("s_branch k2_pass")
    a.label("k2_fin")
    a("v_rcp_f32 v6, v6")
    a(f"s_lshl_b32 s{sT0}, s{sQB}, 3")
    a(f"s_add_u32 s{sT0}, s{sT0}, s{sW}")
    a(f"s_mul_i32 s{sT0}, s{sT0}, {NSTEP*1024}")
    a(f"s_add_u32 s{sT0}, s{sT0}, {WS_AF}")
    a(f"s_lshl_b32 s{sT1}, s{sHead}, 10")
    a(f"s_add_u32 s{sT1}, s{sT1}, s{sT0}")
    a(f"v_mul_f32 v6, v6, v{vG}")
    for r in range(10): a(f"v_mul_f32 v{vO+r}, v6, v{vO+r}")
    for k in range(5): a(f"v_cvt_pk_bf16_f32 v{vP+k}, v{vO+2*k}, v{vO+2*k+1}")
    a(f"buffer_store_dwordx4 {vr(vP,4)}, v{vLane16}, {sr(S_WS,4)}, s{sT1} offen")
    a(f"s_lshr_b32 s{sT1}, s{sHead}, 2")
    a(f"s_lshl_b32 s{sT1}, s{sT1}, 9")
    a(f"s_and_b32 s{sT2}, s{sHead}, 3")
    a(f"s_lshl_b32 s{sT2}, s{sT2}, 2")
    a(f"s_add_u32 s{sT0}, s{sT0}, s{sT1}")
    a(f"s_add_u32 s{sT0}, s{sT0}, s{sT2}")
    a(f"s_add_u32 s{sT0}, s{sT0}, {32*1024}")
    a("s_mov_b32 exec_hi, 0")
    a(f"buffer_store_dword v{vP+4}, v{vLane16}, {sr(S_WS,4)}, s{sT0} offen")
    if common.PROF:
        a("s_waitcnt vmcnt(0)")
        stamp(a, 7)
        stamp_flush(a, 8, 1, S_WS, sW, 124)
    a.label("k2_end")
    a("s_endpgm")
    return a
```

```python
from common import *
import common

S_WS, S_X, S_DS, S_OUT = 8, 12, 16, 20
sW, sRB, sNB = 3, 4, 5
sA0, sA1, sB0, sB1, sB2 = 24, 25, 26, 27, 28
sT0, sT1, sT2 = 30, 31, 32
NS = NSTEP // 4
DEPTH = 6
vL16 = 2
vX = 4
vG = 28
vD = 36
vE = 39
vBUF = 40
vAC = vBUF + 20 * DEPTH
K3_LDS = 4 * 24 * 1024

def gen_k3():
    a = Asm()
    a("s_cmp_ge_u32 s2, 192")
    a("s_cbranch_scc1 k3_end")
    stamp_start(a)
    srd(a, S_WS, KA_WS, WS_SIZE)
    srd(a, S_X, KA_X, S * D * 2)
    srd(a, S_DS, KA_DSKIP, D * 2)
    srd(a, S_OUT, KA_OUT, S * D * 4)
    a("v_lshrrev_b32 v2, 6, v0")
    a("v_and_b32 v1, 63, v0")
    a(f"v_readfirstlane_b32 s{sW}, v2")
    a(f"v_lshlrev_b32 v{vL16}, 4, v1")
    a(f"s_and_b32 s{sT0}, s2, 7")
    a(f"s_bfe_u32 s{sT1}, s2, 0x20003")
    a(f"s_lshl_b32 s{sRB}, s{sT0}, 2")
    a(f"s_add_u32 s{sRB}, s{sRB}, s{sT1}")
    a(f"s_lshr_b32 s{sNB}, s2, 5")
    a(f"s_mul_i32 s{sT0}, s{sW}, {NS*1024}")
    a(f"s_mul_i32 s{sA0}, s{sRB}, {2*NSTEP*1024}")
    a(f"s_add_u32 s{sA0}, s{sA0}, s{sT0}")
    a(f"s_add_u32 s{sA0}, s{sA0}, {WS_AF}")
    a(f"s_add_u32 s{sA1}, s{sA0}, {NSTEP*1024}")
    a(f"s_mul_i32 s{sB0}, s{sNB}, {3*NSTEP*1024}")
    a(f"s_add_u32 s{sB0}, s{sB0}, s{sT0}")
    a(f"s_add_u32 s{sB0}, s{sB0}, {WS_BF}")
    a(f"s_add_u32 s{sB1}, s{sB0}, {NSTEP*1024}")
    a(f"s_add_u32 s{sB2}, s{sB1}, {NSTEP*1024}")
    a("s_waitcnt lgkmcnt(0)")
    def issue(j):
        B = vBUF + 20 * (j % DEPTH)
        for i, s in enumerate((sA0, sB0, sA1, sB1, sB2)):
            slot = (0, 2, 1, 3, 4)[i]
            a(f"buffer_load_dwordx4 {vr(B+4*slot,4)}, v{vL16}, {sr(S_WS,4)}, s{s} offen offset:{(j%4)*1024}")
        if j % 4 == 3:
            for s in (sA0, sA1, sB0, sB1, sB2): a(f"s_add_u32 s{s}, s{s}, 4096")
    for j in range(DEPTH): issue(j)
    a("v_lshrrev_b32 v3, 5, v1")
    a(f"s_lshl_b32 s{sT0}, s{sRB}, 6")
    a(f"s_lshl_b32 s{sT1}, s{sW}, 3")
    a(f"s_add_u32 s{sT0}, s{sT0}, s{sT1}")
    a(f"v_lshl_add_u32 v3, v3, 2, s{sT0}")
    a(f"v_mul_u32_u24 v{vE}, 576, v3")
    a(f"s_mul_i32 s{sT1}, s{sNB}, 96")
    a(f"v_and_b32 v{vD}, 31, v1")
    a(f"v_add_u32 v{vD}, s{sT1}, v{vD}")
    a(f"v_add_u32 v{vE}, v{vE}, v{vD}")
    a(f"v_lshlrev_b32 v{vD+2}, 1, v{vD}")
    a(f"v_lshlrev_b32 v{vG+7}, 1, v{vE}")
    a(f"s_mov_b32 s{sT1}, {32*1152}")
    NEPI = 24 + 3 + 2
    for aa in range(2):
        for i in range(4):
            for b in range(3):
                a(f"buffer_load_ushort v{vX+12*aa+3*i+b}, v{vG+7}, {sr(S_X,4)}, {'0' if aa == 0 else 's%d' % sT1} offen offset:{1152*i+64*b}")
    a("v_lshlrev_b32 v3, 2, v3")
    a(f"s_mov_b32 s{sT2}, {WS_G}")
    for b in range(3):
        a(f"buffer_load_ushort v{vD+b}, v{vD+2}, {sr(S_DS,4)}, 0 offen offset:{64*b}")
    for aa in range(2):
        a(f"buffer_load_dwordx4 {vr(vG+4*aa,4)}, v3, {sr(S_WS,4)}, s{sT2} offen offset:{128*aa}")
    stamp(a, 1)
    for j in range(NS):
        if j == 1: stamp(a, 2)
        newer = min(NS, j + DEPTH) - (j + 1)
        cnt = 5 * newer + (NEPI if j < DEPTH else 0)
        a(f"s_waitcnt vmcnt({min(cnt, 63)})")
        B = vBUF + 20 * (j % DEPTH)
        for aa in range(2):
            for b in range(3):
                acc = vAC + 16 * (3 * aa + b)
                a(f"v_mfma_f32_32x32x16_bf16 {vr(acc,16)}, {vr(B+4*aa,4)}, {vr(B+8+4*b,4)}, {'0' if j == 0 else vr(acc,16)}")
        if j + DEPTH < NS: issue(j + DEPTH)
    stamp(a, 3)
    a(f"s_mul_i32 s{sT0}, s{sW}, {24*1024}")
    a(f"v_add_u32 v3, s{sT0}, v{vL16}")
    for t in range(6):
        for g in range(4):
            a(f"ds_write_b128 v3, {vr(vAC+16*t+4*g,4)} offset:{(g*6+t)*1024}")
    a(f"s_mul_i32 s{sT0}, s{sW}, {6*1024}")
    a(f"v_add_u32 v3, s{sT0}, v{vL16}")
    a(f"v_add_u32 v1, {48*1024}, v3")
    for i in range(8): a(f"v_sub_f32 v{vG+i}, 1.0, v{vG+i}")
    for b in range(3): a(f"v_lshlrev_b32 v{vD+b}, 16, v{vD+b}")
    for aa in range(2):
        for i in range(4):
            for b in range(3):
                x = vX + 12 * aa + 3 * i + b
                a(f"v_lshlrev_b32 v{x}, 16, v{x}")
                a(f"v_mul_f32 v{x}, v{x}, v{vD+b}")
                a(f"v_mul_f32 v{x}, v{x}, v{vG+4*aa+i}")
    a(f"v_lshlrev_b32 v{vE}, 2, v{vE}")
    a("s_waitcnt lgkmcnt(0)")
    a("s_barrier")
    stamp(a, 4)
    R = vBUF
    for t in range(6):
        for src in range(4):
            a(f"ds_read_b128 {vr(R+16*t+4*src,4)}, v{3 if src < 2 else 1} offset:{(src&1)*24*1024 + t*1024}")
        if t == 2: a("s_waitcnt lgkmcnt(3)")
    sR = [0, 33, 34, 35, 36, 37, 38, 39]
    for k in range(1, 8):
        a(f"s_mov_b32 s{sR[k]}, {((k >> 2) * 32 + (k & 3)) * 2304}")
    for t in range(6):
        if t == 0: a("s_waitcnt lgkmcnt(12)")
        if t == 3: a("s_waitcnt lgkmcnt(0)")
        aa, b = t // 3, t % 3
        for i in range(4):
            x = vX + 12 * aa + 3 * i + b
            q = R + 16 * t + i
            a(f"v_add_f32 v{q}, v{q}, v{q+4}")
            a(f"v_add_f32 v{q+8}, v{q+8}, v{q+12}")
            a(f"v_add_f32 v{x}, v{x}, v{q}")
            a(f"v_add_f32 v{x}, v{x}, v{q+8}")
            k = 4 * aa + i
            a(f"buffer_store_dword v{x}, v{vE}, {sr(S_OUT,4)}, {'0' if k == 0 else 's%d' % sR[k]} offen offset:{128*b}")
    if common.PROF:
        stamp(a, 5)
        a("s_waitcnt vmcnt(0)")
        stamp(a, 6)
        stamp_flush(a, 7, 2, S_WS, sW)
    a.label("k3_end")
    a("s_endpgm")
    return a
```

```python
import sys, re
from asmtool import fix_hazards, max_regs, Asm
from common import *
import k1, k2, k3
NAME = "gated_mix__mha_block__ssm_conv_s5__prompt"
def gbar(a, idx):
    a("s_mov_b64 exec, -1")
    a("s_waitcnt vmcnt(0) lgkmcnt(0)")
    a("s_barrier")
    a("v_lshrrev_b32 v2, 6, v0")
    a("v_readfirstlane_b32 s5, v2")
    a("s_cmp_lg_u32 s5, 0")
    a(f"s_cbranch_scc1 gb{idx}_wait")
    a("s_load_dwordx2 s[8:9], s[0:1], 112")
    a("s_mov_b32 s10, 256")
    a("s_mov_b32 s11, 0x20000")
    a("buffer_wbl2 sc1")
    a("s_waitcnt vmcnt(0) lgkmcnt(0)")
    a("s_mov_b64 exec, 1")
    a("v_mov_b32 v2, 1")
    a(f"v_mov_b32 v3, {idx*128}")
    a("buffer_atomic_add v2, v3, s[8:11], 0 offen sc1")
    a("s_mov_b32 s12, 0")
    a.label(f"gb{idx}_spin")
    a("s_sleep 1")
    a("buffer_load_dword v2, v3, s[8:11], 0 offen sc1")
    a("s_add_u32 s12, s12, 1")
    a("s_waitcnt vmcnt(0)")
    a("v_readfirstlane_b32 s13, v2")
    a("s_cmp_ge_u32 s12, 0x100000")
    a(f"s_cbranch_scc1 gb{idx}_out")
    a("s_cmp_lt_u32 s13, 256")
    a(f"s_cbranch_scc1 gb{idx}_spin")
    a.label(f"gb{idx}_out")
    a("s_mov_b64 exec, -1")
    a("buffer_inv sc1")
    a("s_waitcnt vmcnt(0)")
    a.label(f"gb{idx}_wait")
    a("s_barrier")
def build(out, spin=0):
    ref = open("cdna_kernels/" + NAME + ".s.ref").read().split("\n")
    head = [l for l in ref if l.startswith(";") and "@launch" not in l]
    a = Asm()
    a("s_cmp_ge_u32 s2, 256")
    a("s_cbranch_scc1 the_end")
    if spin:
        a("s_memrealtime s[100:101]")
    L1 = k1.gen_k1().lines
    out_l = []; seen = 0
    for i, l in enumerate(L1):
        if l == "s_endpgm":
            seen += 1
            if seen == 2: out_l.append("s_barrier")
            out_l.append("s_branch p1_done")
        else: out_l.append(l)
    a.lines += out_l
    a.label("p1_done"); gbar(a, 0)
    a.lines += [("s_branch p2_done" if l == "s_endpgm" else l) for l in k2.gen_k2().lines]
    a.label("p2_done"); gbar(a, 1)
    a("s_cmp_ge_u32 s5, 4")
    a("s_cbranch_scc1 the_end")
    a.lines += [("s_branch p3_done" if l == "s_endpgm" else l) for l in k3.gen_k3().lines]
    a.label("p3_done")
    if spin:
        a("s_cmp_lg_u32 s2, 0")
        a("s_cbranch_scc1 the_end")
        a.label("spin")
        a("s_memrealtime s[72:73]")
        a("s_waitcnt lgkmcnt(0)")
        a("s_sub_u32 s72, s72, s100")
        a(f"s_cmp_lt_u32 s72, {spin}")
        a("s_cbranch_scc1 spin")
    a.label("the_end")
    a("s_endpgm")
    body, nfix = fix_hazards(a.text())
    n = NAME + "_kernel"
    txt = "\n".join(head) + "\n; @launch grid=(256,1,1) block=(512,1,1) lds=163840\n"
    txt += '.amdgcn_target "amdgcn-amd-amdhsa--gfx950"\n.text\n'
    txt += f".globl {n}\n.p2align 8\n.type {n},@function\n{n}:\n" + body + kernel_footer(n, 256, 102, 256)
    open(out, "w").write(txt)
build("mono0.s"); build("mono100.s", 10000)
```

```python
import struct, math
from asmtool import Asm, vr, ar, sr

def f32(x):
    return "0x%08x" % struct.unpack("<I", struct.pack("<f", x))[0]

S, D, H, DH = 2048, 576, 32, 18
LOG2E = math.log2(math.e)
QSCALE = LOG2E / math.sqrt(DH)
INV2PI = 1.0 / (2 * math.pi)

KA_X, KA_WQKV, KA_WO, KA_BX, KA_LRE, KA_LIM, KA_BRE, KA_BIM, KA_CRE, KA_CIM, KA_LOGDT, KA_DSKIP, KA_GW, KA_OUT, KA_DBG, KA_WS = [8 * i for i in range(16)]

Q_TS, Q_HS = 1152, 64 * 1152
KV_TS, KV_HS = 2368, 64 * 2368
WS_Q = 0
WS_KV = WS_Q + 32 * Q_HS
WS_U = WS_KV + 32 * KV_HS
WS_OF = WS_U + 64 * 18 * 4096
WS_HF = WS_OF + 64 * 36 * 1024
WS_WOF = WS_HF + 64 * 72 * 1024
WS_CF = WS_WOF + 18 * 36 * 1024
WS_Y = WS_CF + 18 * 72 * 1024
WS_P = WS_Y + 64 * 18 * 4096
WS_E = WS_P + 128 * 576 * 8
WS_T = WS_E + 16 * 576 * 8
WS_G = WS_T + 10 * 576 * 8
WS_CNT = (WS_G + 2048 * 4 + 255) // 256 * 256
WS_END = WS_CNT + 64 * 256
WS_SIZE = 1 << 25
assert WS_END <= WS_SIZE

def srd(a, s, ka, nbytes):
    a(f"s_load_dwordx2 {sr(s,2)}, s[0:1], {ka}")
    a(f"s_mov_b32 s{s+2}, {nbytes}")
    a(f"s_mov_b32 s{s+3}, 0x20000")

def lam_base(a, lre, lim, ldt):
    a(f"v_lshlrev_b32 v{lre}, 16, v{lre}")
    a(f"v_lshlrev_b32 v{lim}, 16, v{lim}")
    a(f"v_lshlrev_b32 v{ldt}, 16, v{ldt}")
    a(f"v_mul_f32 v{ldt}, {f32(LOG2E)}, v{ldt}")
    a(f"v_exp_f32 v{ldt}, v{ldt}")
    a(f"v_cvt_pk_bf16_f32 v{ldt}, v{ldt}, v{ldt}")
    a(f"v_and_b32 v{ldt}, 0xffff0000, v{ldt}")
    a(f"v_mul_f32 v{lre}, v{ldt}, v{lre}")
    a(f"v_mul_f32 v{lim}, v{ldt}, v{lim}")
    a(f"v_mul_f32 v{lre}, {f32(LOG2E)}, v{lre}")
    a(f"v_mul_f32 v{lim}, {f32(INV2PI)}, v{lim}")

def lam_pow(a, dre, dim, ea, ph, k, t):
    ks = k if isinstance(k, str) else f32(float(k))
    a(f"v_mul_f32 v{t}, {ks}, v{ea}")
    a(f"v_mul_f32 v{dim}, {ks}, v{ph}")
    a(f"v_exp_f32 v{t}, v{t}")
    a(f"v_fract_f32 v{dim}, v{dim}")
    a(f"v_cos_f32 v{dre}, v{dim}")
    a(f"v_sin_f32 v{dim}, v{dim}")
    a(f"v_mul_f32 v{dre}, v{t}, v{dre}")
    a(f"v_mul_f32 v{dim}, v{t}, v{dim}")

def kernel_footer(name, vgpr, sgpr, accum):
    return f""".section .rodata,"a"
.p2align 6
.amdhsa_kernel {name}
  .amdhsa_next_free_vgpr {vgpr}
  .amdhsa_next_free_sgpr {sgpr}
  .amdhsa_accum_offset {accum}
  .amdhsa_group_segment_fixed_size 0
  .amdhsa_kernarg_size 128
  .amdhsa_user_sgpr_count 2
  .amdhsa_user_sgpr_kernarg_segment_ptr 1
  .amdhsa_system_sgpr_workgroup_id_x 1
.end_amdhsa_kernel
.text
"""

PROF = False
WS_PROF = 28 << 20
assert WS_END <= WS_PROF
def set_prof(v):
    global PROF
    PROF = v
def stamp(a, i):
    if not PROF: return
    a(f"s_memtime s[{70+2*i}:{71+2*i}]")
    a("s_waitcnt lgkmcnt(0)")
def stamp_flush(a, n, kidx, s_ws, s_wave, vt=250):
    if not PROF: return
    a("s_mov_b64 exec, -1")
    a("s_memrealtime s[98:99]")
    a("s_waitcnt lgkmcnt(0)")
    a(f"v_mov_b32 v{vt}, 0")
    for i in range(n):
        a(f"v_writelane_b32 v{vt}, s{70+2*i}, {i}")
    a(f"v_writelane_b32 v{vt}, s96, 14")
    a(f"v_writelane_b32 v{vt}, s98, 15")
    a(f"s_lshl_b32 s98, s2, 4")
    a(f"s_add_u32 s98, s98, s{s_wave}")
    a(f"s_lshl_b32 s98, s98, 6")
    a(f"s_add_u32 s98, s98, {WS_PROF + (kidx << 20)}")
    a(f"v_mbcnt_lo_u32_b32 v{vt+1}, -1, 0")
    a(f"v_lshlrev_b32 v{vt+1}, 2, v{vt+1}")
    a("s_mov_b64 exec, 0xffff")
    a(f"buffer_store_dword v{vt}, v{vt+1}, s[{s_ws}:{s_ws+3}], s98 offen")
def stamp_start(a):
    if not PROF: return
    a("s_memrealtime s[96:97]")
    stamp(a, 0)

OPT = {}
def opt(k, d=None): return OPT.get(k, d)

def pk_step(a, dst, lam, h, u):
    a(f"v_pk_fma_f32 {vr(dst,2)}, {vr(lam,2)}, {vr(h,2)}, {vr(u,2)} op_sel:[0,0,0] op_sel_hi:[0,1,1]")
    a(f"v_pk_fma_f32 {vr(dst,2)}, {vr(lam,2)}, {vr(h,2)}, {vr(dst,2)} op_sel:[1,1,0] op_sel_hi:[1,0,1] neg_lo:[1,0,0]")
```

```python
from common import *
import common

SLOT = 40960
WOFF = 16384
NST = 9
sRB, sCT, sW = 3, 4, 5
S_X, S_W, S_W2, S_WS = 8, 12, 16, 20
sT0, sT1, sT2, sT3, sT4, sT5 = 24, 25, 26, 27, 28, 29
S_A, S_B, S_C = 32, 36, 40
sLW = 44
EXE = SLOT + 8192
EXZ = EXE - 7 * 768

def loader(a, typ):
    vX, vW = 8, 9
    a(f"s_sub_u32 s{sLW}, s{sW}, 4")
    a("v_lshrrev_b32 v3, 3, v1")
    a(f"s_lshl_b32 s{sT1}, s{sLW}, 3")
    a(f"v_add_u32 v3, s{sT1}, v3")
    a("v_and_b32 v4, 7, v1")
    a("v_bfe_u32 v2, v3, 1, 3")
    a("v_xor_b32 v2, v2, v4")
    a("v_mul_u32_u24 v5, 1152, v3")
    a("v_lshl_add_u32 v5, v2, 4, v5")
    a(f"s_mul_i32 s{sT3}, s{sRB}, {128*1152}")
    a(f"v_add_u32 v{vX}, s{sT3}, v5")
    if typ == "b":
        a(f"s_sub_u32 s{sT3}, s{sCT}, 9")
        a(f"s_mul_i32 s{sT3}, s{sT3}, {96*1152}")
        a(f"v_add_u32 v{vW}, s{sT3}, v5")
    else:
        a("v_lshrrev_b32 v2, 2, v1")
        a("v_and_b32 v2, 4, v2")
        a("v_xor_b32 v2, v2, v4")
        a("v_mul_u32_u24 v5, 3456, v3")
        a("v_lshl_add_u32 v5, v2, 4, v5")
        a(f"s_mul_i32 s{sT3}, s{sCT}, 384")
        a(f"v_add_u32 v{vW}, s{sT3}, v5")
    a(f"s_lshl_b32 s{sLW}, s{sLW}, 10")
    a("s_waitcnt lgkmcnt(0)")
    def issue(t):
        slot = (t % 4) * SLOT
        xs = [("x", i) for i in range(4)]; ws = [("w", i) for i in range(6)]
        for kind, i in [ws[0], xs[0], ws[2], xs[1], ws[4], xs[2], ws[1], xs[3], ws[3], ws[5]]:
            if kind == "x":
                a(f"s_add_u32 m0, s{sLW}, {slot + i*4096}")
                a(f"s_mov_b32 s{sT0}, {t*128 + i*32*1152}")
                a(f"buffer_load_dwordx4 v{vX}, {sr(S_X,4)}, s{sT0} offen lds")
            else:
                a(f"s_add_u32 m0, s{sLW}, {slot + WOFF + i*4096}")
                if typ == "b":
                    a(f"s_mov_b32 s{sT0}, {t*128 + (i>>1)*32*1152}")
                    a(f"buffer_load_dwordx4 v{vW}, {sr(S_W2 if i & 1 else S_W,4)}, s{sT0} offen lds")
                else:
                    a(f"s_mov_b32 s{sT0}, {t*64*3456 + (i&1)*32*3456 + (i>>1)*128}")
                    a(f"buffer_load_dwordx4 v{vW}, {sr(S_W,4)}, s{sT0} offen lds")
    stamp(a, 1)
    issue(0); issue(1)
    stamp(a, 2)
    issued = 1
    for t in range(NST):
        a(f"s_waitcnt vmcnt({10*(issued - t)})")
        if typ == "b" and t == 8: a("s_waitcnt lgkmcnt(0)")
        stamp(a, 3 + t)
        a("s_barrier")
        if t + 2 < NST:
            issue(t + 2); issued = t + 2
        if typ == "b" and t == 7:
            for i in range(4): a(f"v_mov_b32 v{12+i}, 0")
            a(f"v_lshl_add_u32 v2, v1, 4, s{sLW}")
            a(f"ds_write_b128 v2, v[12:15] offset:{EXE - 8192}")
            a(f"ds_write_b128 v2, v[12:15] offset:{EXE - 4096}")
    stamp_flush(a, 12, 0, S_WS, sW)
    a("s_endpgm")

vXA = 2
vWA = 6
vEA = 10
vF = [16, 44]
vAC = 72
vL = 168
vPK = 186

def compute_main(a, typ):
    def reads(q):
        s = q % 4
        F = vF[q % 2]
        out = []
        for u in range(6):
            g = [f"ds_read_b128 {vr(F,4)}, v{vXA+s}"] if u == 0 else []
            if typ == "w":
                for j2 in range(2):
                    g.append(f"ds_read_b64_tr_b16 {vr(F+4+4*u+2*j2,2)}, v{vWA+(u&1)} offset:{(u>>1)*8192 + (16*s+4*j2)*128}")
            else:
                g.append(f"ds_read_b128 {vr(F+4+4*u,4)}, v{vWA+s} offset:{u*4096}")
            out.append(g)
        return out
    def advance(t):
        d = SLOT if t % 4 else -3 * SLOT
        regs = [vXA + i for i in range(4)] + [vWA + i for i in range(4 if typ == "b" else 2)]
        return [f"v_add_u32 v{r}, {d & 0xffffffff}, v{r}" for r in regs]
    stamp(a, 1)
    a("s_barrier")
    stamp(a, 2)
    for g in reads(0):
        for l in g: a(l)
    NQ = 4 * NST
    for q in range(NQ):
        F = vF[q % 2]
        cur = reads(q)
        nxt = reads(q + 1) if q + 1 < NQ else [[]] * 6
        for u in range(6):
            newer = sum(len(g) for g in cur[u+1:]) + sum(len(g) for g in nxt[:u])
            a(f"s_waitcnt lgkmcnt({newer})")
            c = "0" if q == 0 else vr(vAC + 16 * u, 16)
            a(f"v_mfma_f32_32x32x16_bf16 {vr(vAC+16*u,16)}, {vr(F,4)}, {vr(F+4+4*u,4)}, {c}")
            if u == 0 and (q + 1) % 4 == 0 and q + 1 < NQ:
                a("s_barrier")
                for l in advance((q + 1) // 4): a(l)
            for l in nxt[u]: a(l)
    stamp(a, 3)

def fin(a):
    if common.PROF:
        stamp(a, 4)
        a("s_waitcnt vmcnt(0)")
        stamp(a, 5)
        stamp_flush(a, 6, 0, S_WS, sW)
    a("s_endpgm")

def compute_w(a):
    ST = opt("k1st", "")
    a("v_and_b32 v12, 31, v1")
    a("v_lshrrev_b32 v13, 5, v1")
    a(f"s_lshl_b32 s{sT0}, s{sW}, 12")
    a("v_bfe_u32 v14, v12, 1, 3")
    a("v_xor_b32 v14, v14, v13")
    a(f"v_lshl_add_u32 v15, v12, 7, s{sT0}")
    for s in range(4):
        a(f"v_xor_b32 v16, {2*s}, v14")
        a(f"v_lshl_add_u32 v{vXA+s}, v16, 4, v15")
    a("v_bfe_u32 v16, v1, 2, 2")
    a("v_lshl_add_u32 v17, v13, 3, v16")
    a("v_lshlrev_b32 v17, 7, v17")
    a("v_bfe_u32 v18, v1, 4, 1")
    a("v_lshl_add_u32 v17, v18, 5, v17")
    a("v_and_b32 v18, 3, v1")
    a("v_lshl_add_u32 v17, v18, 3, v17")
    a(f"v_add_u32 v17, {WOFF}, v17")
    a("v_bfe_u32 v18, v1, 3, 1")
    a(f"v_lshl_add_u32 v{vWA}, v18, 6, v17")
    a(f"v_xor_b32 v{vWA+1}, 64, v{vWA}")
    sHS, sCS, sB0, sB1, sKind, sJ, sTT, sSc = 46, 47, 48, 49, 50, 51, 52, 54
    a(f"s_mul_i32 s{sKind}, s{sCT}, 11")
    a(f"s_lshr_b32 s{sKind}, s{sKind}, 5")
    a(f"s_mul_i32 s{sT1}, s{sKind}, 3")
    a(f"s_sub_u32 s{sJ}, s{sCT}, s{sT1}")
    a(f"s_lshl_b32 s{sTT}, s{sRB}, 2")
    a(f"s_add_u32 s{sTT}, s{sTT}, s{sW}")
    a(f"s_cmp_eq_u32 s{sKind}, 0")
    a(f"s_mov_b32 s{sT3}, {KV_HS}")
    a(f"s_cselect_b32 s{sHS}, {Q_HS}, s{sT3}")
    a(f"s_movk_i32 s{sT3}, {KV_TS}")
    a(f"s_cselect_b32 s{sT4}, {Q_TS}, s{sT3}")
    a(f"s_cselect_b32 s{sB0}, {WS_Q}, {WS_KV}")
    a(f"s_cselect_b32 s{sSc}, {f32(QSCALE)}, 1.0")
    a(f"s_mov_b32 s{sSc+1}, s{sSc}")
    a(f"s_mul_i32 s{sT4}, s{sT4}, s{sTT}")
    a(f"s_add_u32 s{sB0}, s{sB0}, s{sT4}")
    a(f"s_cmp_eq_u32 s{sKind}, 2")
    a(f"s_movk_i32 s{sT3}, 288")
    a(f"s_cselect_b32 s{sCS}, 304, s{sT3}")
    a(f"s_cselect_b32 s{sT2}, 1152, 0")
    a(f"s_add_u32 s{sB0}, s{sB0}, s{sT2}")
    a(f"s_lshl_b32 s{sT2}, s{sCS}, 1")
    a(f"s_add_u32 s{sB1}, s{sB0}, s{sT2}")
    a(f"s_mul_i32 s{sT2}, s{sJ}, 192")
    a(f"s_movk_i32 s{sT3}, 3641")
    a(f"v_mul_u32_u24 v18, s{sCS}, v13")
    a(f"v_add_u32 v20, s{sT2}, v12")
    for u in range(6):
        a(f"v_add_u32 v16, {32*u}, v20")
        a(f"v_mul_u32_u24 v17, s{sT3}, v16")
        a(f"v_lshrrev_b32 v17, 16, v17")
        a(f"v_mul_u32_u24 v19, 18, v17")
        a(f"v_sub_u32 v16, v16, v19")
        a(f"v_mul_lo_u32 v17, v17, s{sHS}")
        a(f"v_lshl_add_u32 v16, v16, 4, v18")
        a(f"v_add_u32 v{vEA+u}, v16, v17")
    a("s_waitcnt lgkmcnt(0)")
    compute_main(a, "w")
    for u in range(6):
        P = vPK + 8 * u
        for j in range(8):
            r = vAC + 16 * u + 2 * j
            a(f"v_pk_mul_f32 {vr(r,2)}, {vr(r,2)}, {sr(sSc,2)}")
        for j in range(8):
            a(f"v_cvt_pk_bf16_f32 v{P+j}, v{vAC+16*u+2*j}, v{vAC+16*u+2*j+1}")
            if j == 3: a(f"buffer_store_dwordx4 {vr(P,4)}, v{vEA+u}, {sr(S_WS,4)}, s{sB0} offen {ST}")
        a(f"buffer_store_dwordx4 {vr(P+4,4)}, v{vEA+u}, {sr(S_WS,4)}, s{sB1} offen {ST}")
    a(f"s_cmp_lg_u32 s{sKind}, 2")
    a("s_cbranch_scc1 k1_fin")
    a(f"s_mul_i32 s{sT0}, s{sJ}, 11")
    a(f"s_min_u32 s{sT1}, s{sJ}, 1")
    a(f"s_sub_u32 s{sT0}, s{sT0}, s{sT1}")
    a("v_lshrrev_b32 v2, 2, v1")
    a("v_cmp_gt_u32 vcc, 11, v2")
    a(f"v_add_u32 v2, s{sT0}, v2")
    a(f"v_mul_lo_u32 v2, v2, s{sHS}")
    a("v_and_b32 v3, 3, v1")
    a("v_mul_u32_u24 v3, 304, v3")
    a("v_add_u32 v2, v2, v3")
    for i in range(4):
        a(f"v_mov_b32 v{4+i}, 0x3f803f80")
    a("s_and_saveexec_b64 s[30:31], vcc")
    a(f"buffer_store_dwordx4 v[4:7], v2, {sr(S_WS,4)}, s{sB0} offen offset:288 {ST}")
    a("s_branch k1_fin")

def compute_b(a):
    ST = opt("k1st", "")
    a("v_and_b32 v12, 31, v1")
    a("v_lshrrev_b32 v13, 5, v1")
    a(f"s_sub_u32 s{sT0}, s{sCT}, 9")
    sC3, sTT = 46, 47
    a(f"s_mul_i32 s{sC3}, s{sT0}, 3")
    a(f"s_mul_i32 s{sT0}, s{sT0}, 192")
    a(f"v_lshl_add_u32 v14, v12, 1, s{sT0}")
    a("s_waitcnt lgkmcnt(0)")
    for g in range(3):
        a(f"buffer_load_ushort v{vPK+3*g}, v14, {sr(S_A,4)}, 0 offen offset:{64*g}")
        a(f"buffer_load_ushort v{vPK+3*g+1}, v14, {sr(S_B,4)}, 0 offen offset:{64*g}")
        a(f"buffer_load_ushort v{vPK+3*g+2}, v14, {sr(S_C,4)}, 0 offen offset:{64*g}")
    a("v_bfe_u32 v14, v12, 2, 1")
    a("v_lshlrev_b32 v14, 4, v14")
    a("v_lshrrev_b32 v15, 3, v12")
    a("v_lshl_add_u32 v14, v15, 2, v14")
    a("v_and_b32 v15, 3, v12")
    a("v_add_u32 v14, v14, v15")
    a(f"s_lshl_b32 s{sT0}, s{sW}, 12")
    a(f"v_lshl_add_u32 v15, v14, 7, s{sT0}")
    a("v_bfe_u32 v14, v14, 1, 3")
    a("v_xor_b32 v14, v14, v13")
    for s in range(4):
        a(f"v_xor_b32 v16, {2*s}, v14")
        a(f"v_lshl_add_u32 v{vXA+s}, v16, 4, v15")
    a("v_bfe_u32 v14, v12, 1, 3")
    a("v_xor_b32 v14, v14, v13")
    a("v_lshlrev_b32 v15, 7, v12")
    a(f"v_add_u32 v15, {WOFF}, v15")
    for s in range(4):
        a(f"v_xor_b32 v16, {2*s}, v14")
        a(f"v_lshl_add_u32 v{vWA+s}, v16, 4, v15")
    a(f"s_lshl_b32 s{sTT}, s{sRB}, 2")
    a(f"s_add_u32 s{sTT}, s{sTT}, s{sW}")
    vN8, vEX, vPA, vL16 = vEA, vEA + 1, vEA + 2, vEA + 3
    a(f"v_lshlrev_b32 v{vN8}, 3, v12")
    a(f"s_mul_i32 s{sT1}, s{sW}, {2*768}")
    a(f"v_mul_u32_u24 v14, 768, v13")
    a(f"v_add3_u32 v{vEX}, v14, v{vN8}, s{sT1}")
    a(f"v_mul_u32_u24 v14, {576*8}, v13")
    a(f"v_add_u32 v{vPA}, v14, v{vN8}")
    a(f"v_lshlrev_b32 v{vL16}, 4, v1")
    a("s_waitcnt vmcnt(0)")
    for g in range(3):
        lre, lim, ldt = vPK + 3 * g, vPK + 3 * g + 1, vPK + 3 * g + 2
        lam_base(a, lre, lim, ldt)
        B = vL + 6 * g
        lam_pow(a, B, B + 1, lre, lim, 1.0, ldt)
        lam_pow(a, B + 2, B + 3, lre, lim, 2.0, ldt)
        lam_pow(a, B + 4, B + 5, lre, lim, 16.0, ldt)
    compute_main(a, "b")
    a(f"s_mul_i32 s{sT0}, s{sTT}, 18")
    a(f"s_add_u32 s{sT0}, s{sT0}, s{sC3}")
    a(f"s_lshl_b32 s{sT0}, s{sT0}, 12")
    a(f"s_add_u32 s{sT0}, s{sT0}, {WS_U}")
    sU = [sT0, sT2, sT3]
    a(f"s_add_u32 s{sT2}, s{sT0}, 4096")
    a(f"s_add_u32 s{sT3}, s{sT0}, 8192")
    def packstore(g, q):
        R, I, P = vAC + 32 * g, vAC + 32 * g + 16, vPK + 16 * g
        for r in range(4 * q, 4 * q + 4):
            a(f"v_cvt_pk_bf16_f32 v{P+r}, v{R+r}, v{I+r}")
        a(f"buffer_store_dwordx4 {vr(P+4*q,4)}, v{vL16}, {sr(S_WS,4)}, s{sU[g]} offen offset:{q*1024} {ST}")
    def hstep(j):
        for half in range(2):
            for g in range(3):
                R, I, B = vAC + 32 * g + 2 * j, vAC + 32 * g + 16 + 2 * j, vL + 6 * g + 2
                if half == 0:
                    a(f"v_pk_fma_f32 {vr(R,2)}, {vr(B,2)}, {vr(R-2,2)}, {vr(R,2)} op_sel:[0,0,0] op_sel_hi:[0,1,1]")
                    a(f"v_pk_fma_f32 {vr(I,2)}, {vr(B,2)}, {vr(I-2,2)}, {vr(I,2)} op_sel:[0,0,0] op_sel_hi:[0,1,1]")
                else:
                    a(f"v_pk_fma_f32 {vr(R,2)}, {vr(B,2)}, {vr(I-2,2)}, {vr(R,2)} op_sel:[1,0,0] op_sel_hi:[1,1,1] neg_lo:[1,0,0] neg_hi:[1,0,0]")
                    a(f"v_pk_fma_f32 {vr(I,2)}, {vr(B,2)}, {vr(R-2,2)}, {vr(I,2)} op_sel:[1,0,0] op_sel_hi:[1,1,1]")
    for q in range(4):
        for g in range(3): packstore(g, q)
        for j in (2 * q, 2 * q + 1):
            if j: hstep(j)
    EO = 16
    for g in range(3):
        R, I, B = vAC + 32 * g + 14, vAC + 32 * g + 30, vL + 6 * g
        a(f"v_fma_f32 v{EO+2*g}, v{B}, v{R}, v{R+1}")
        a(f"v_fma_f32 v{EO+2*g+1}, v{B}, v{I}, v{I+1}")
    for g in range(3):
        R, I, B = vAC + 32 * g + 14, vAC + 32 * g + 30, vL + 6 * g
        a(f"v_fma_f32 v{EO+2*g}, -v{B+1}, v{I}, v{EO+2*g}")
        a(f"v_fmac_f32 v{EO+2*g+1}, v{B+1}, v{R}")
        a(f"ds_write_b64 v{vEX}, {vr(EO+2*g,2)} offset:{EXE + g*256}")
    a(f"s_mul_i32 s{sT0}, s{sTT}, {2*576*8}")
    a(f"s_lshl_b32 s{sT1}, s{sC3}, 8")
    a(f"s_add_u32 s{sT0}, s{sT0}, s{sT1}")
    a(f"s_add_u32 s{sT0}, s{sT0}, {WS_P}")
    a("s_waitcnt lgkmcnt(0)")
    a("s_barrier")
    ER = 24
    for s in range(7):
        for g in range(3):
            a(f"ds_read_b64 {vr(ER+6*s+2*g,2)}, v{vEX} offset:{EXZ + s*768 + g*256}")
    for s in range(1, 7):
        a(f"s_waitcnt lgkmcnt({min(15, 3*(6-s))})")
        for g in range(3):
            pk_step(a, ER + 6 * s + 2 * g, vL + 6 * g + 4, ER + 6 * (s - 1) + 2 * g, ER + 6 * s + 2 * g)
    PR = ER + 36
    for g in range(3):
        a(f"buffer_store_dwordx2 {vr(PR+2*g,2)}, v{vPA}, {sr(S_WS,4)}, s{sT0} offen offset:{g*256}")
    a(f"s_cmp_lg_u32 s{sW}, 3")
    a("s_cbranch_scc1 k1_fin")
    for g in range(3):
        pk_step(a, EO + 2 * g, vL + 6 * g + 4, PR + 2 * g, EO + 2 * g)
    a(f"s_mul_i32 s{sT0}, s{sRB}, {576*8}")
    a(f"s_add_u32 s{sT0}, s{sT0}, s{sT1}")
    a(f"s_add_u32 s{sT0}, s{sT0}, {WS_E}")
    a("s_mov_b32 exec_lo, 0")
    for g in range(3):
        a(f"buffer_store_dwordx2 {vr(EO+2*g,2)}, v{vN8}, {sr(S_WS,4)}, s{sT0} offen offset:{g*256}")
    a("s_branch k1_fin")

def aux(a):
    S_CRE, S_CIM, S_WO = 48, 52, 56
    sJ, sK, sCL = 64, 65, 66
    srd(a, S_CRE, KA_CRE, 576 * 576 * 2)
    srd(a, S_CIM, KA_CIM, 576 * 576 * 2)
    srd(a, S_WO, KA_WO, 576 * 576 * 2)
    COEF = 576 * 128
    CST = COEF + 5120
    a("v_lshlrev_b32 v2, 1, v0")
    a("v_lshrrev_b32 v5, 3, v1")
    a("v_mul_u32_u24 v3, 1152, v5")
    a("v_and_b32 v6, 7, v1")
    a("v_lshrrev_b32 v7, 4, v1")
    a("v_xor_b32 v7, v7, v6")
    a("v_lshl_add_u32 v4, v7, 4, v3")
    a("v_xor_b32 v8, 64, v4")
    a("v_lshl_add_u32 v3, v6, 4, v3")
    a(f"s_lshl_b32 s{sCL}, s{sW}, 13")
    a(f"s_add_u32 s{sCL}, s{sCL}, {CST}")
    a(f"s_lshl_b32 s{sJ}, s{sRB}, 3")
    a(f"s_add_u32 s{sJ}, s{sJ}, s{sW}")
    a("s_waitcnt lgkmcnt(0)")
    for rnd in range(2):
        for i, d in enumerate((S_A, S_B, S_C)):
            a(f"buffer_load_ushort v{10+3*rnd+i}, v2, {sr(d,4)}, 0 offen offset:{1024*rnd}")
    def cjob_load():
        a(f"s_mul_i32 s{sT0}, s{sJ}, 7282")
        a(f"s_lshr_b32 s{sT0}, s{sT0}, 16")
        a(f"s_mul_i32 s{sT1}, s{sT0}, 9")
        a(f"s_sub_u32 s{sT1}, s{sJ}, s{sT1}")
        a(f"s_mul_i32 s{sT2}, s{sT0}, {32*1152}")
        a(f"s_lshl_b32 s{sT3}, s{sT1}, 7")
        a(f"s_add_u32 s{sT2}, s{sT2}, s{sT3}")
        for i in range(4):
            for mi, d in enumerate((S_CRE, S_CIM)):
                a(f"s_add_u32 m0, s{sCL}, {mi*4096 + i*1024}")
                a(f"buffer_load_dwordx4 v{8 if i & 1 else 4}, {sr(d,4)}, s{sT2} offen lds")
            if i < 3: a(f"s_add_u32 s{sT2}, s{sT2}, {8*1152}")
    cjob_load()
    a(f"s_cmp_ge_u32 s{sRB}, 9")
    a("s_cbranch_scc1 k1_aux_nowo")
    a(f"s_lshl_b32 s{sT1}, s{sRB}, 7")
    a(f"s_mul_i32 s{sT2}, s{sW}, {8*1152}")
    a(f"s_add_u32 s{sT1}, s{sT1}, s{sT2}")
    a(f"s_lshl_b32 s{sT2}, s{sW}, 10")
    for i in range(9):
        a(f"s_add_u32 m0, s{sT2}, {i*8192}")
        a(f"buffer_load_dwordx4 v3, {sr(S_WO,4)}, s{sT1} offen lds")
        if i < 8: a(f"s_add_u32 s{sT1}, s{sT1}, {64*1152}")
    a("s_waitcnt vmcnt(17)")
    a("s_branch k1_aux_par")
    a.label("k1_aux_nowo")
    a(f"s_cmp_lg_u32 s{sRB}, 15")
    a("s_cbranch_scc1 k1_aux_nocnt")
    a("v_mov_b32 v20, 0")
    a("v_lshlrev_b32 v21, 5, v0")
    a(f"s_mov_b32 s{sT0}, {WS_CNT}")
    a(f"buffer_store_dword v20, v21, {sr(S_WS,4)}, s{sT0} offen")
    a.label("k1_aux_nocnt")
    a("s_waitcnt vmcnt(0)")
    a.label("k1_aux_par")
    stamp(a, 1)
    a(f"s_lshl_b32 s{sT0}, s{sRB}, 4")
    a(f"s_cmp_eq_u32 s{sRB}, 8")
    a(f"s_cselect_b32 s{sT0}, 1, s{sT0}")
    a(f"s_cmp_eq_u32 s{sRB}, 9")
    a(f"s_cselect_b32 s{sT0}, 0x80, s{sT0}")
    a(f"v_cvt_f32_u32 v20, s{sT0}")
    a(f"v_readfirstlane_b32 s{sK}, v20")
    a(f"s_mul_i32 s{sT4}, s{sRB}, {576*8}")
    a(f"s_add_u32 s{sT4}, s{sT4}, {WS_T}")
    a("v_lshlrev_b32 v9, 3, v0")
    for rnd in range(2):
        lre, lim, ldt = 10 + 3 * rnd, 11 + 3 * rnd, 12 + 3 * rnd
        if rnd == 1:
            a(f"s_cmp_lg_u32 s{sW}, 0")
            a("s_cbranch_scc1 k1_aux_coefdone")
        a(f"v_lshlrev_b32 v16, 16, v{lre}")
        a(f"v_lshlrev_b32 v17, 16, v{lim}")
        lam_base(a, lre, lim, ldt)
        lam_pow(a, 18, 19, lre, lim, 1.0, ldt)
        a("v_add_f32 v18, -1.0, v18")
        a("v_mul_f32 v2, v16, v16")
        a("v_fmac_f32 v2, v17, v17")
        a("v_rcp_f32 v2, v2")
        a("v_mul_f32 v52, v18, v16")
        a("v_fmac_f32 v52, v19, v17")
        a("v_mul_f32 v53, v19, v16")
        a("v_fma_f32 v53, -v18, v17, v53")
        a("v_add_f32 v2, v2, v2")
        a("v_mul_f32 v52, v52, v2")
        a("v_mul_f32 v53, v53, v2")
        a(f"v_add_u32 v54, {COEF + 4096*rnd}, v9")
        a("ds_write_b64 v54, v[52:53]")
        a(f"s_cmp_ge_u32 s{sRB}, 10")
        a(f"s_cbranch_scc1 k1_aux_notab{rnd}")
        lam_pow(a, 56, 57, lre, lim, f"s{sK}", ldt)
        if rnd == 1: a(f"s_add_u32 s{sT4}, s{sT4}, 4096")
        a(f"buffer_store_dwordx2 v[56:57], v9, {sr(S_WS,4)}, s{sT4} offen")
        a.label(f"k1_aux_notab{rnd}")
    a.label("k1_aux_coefdone")
    a("v_and_b32 v5, 31, v1")
    a("v_bfe_u32 v6, v1, 1, 3")
    a("v_lshrrev_b32 v7, 5, v1")
    a("v_lshlrev_b32 v9, 2, v7")
    a("v_xor_b32 v6, v6, v9")
    a(f"v_lshl_add_u32 v5, v5, 7, s{sCL}")
    for q in range(4):
        a(f"v_xor_b32 v9, {q}, v6")
        a(f"v_lshl_add_u32 v{12+q}, v9, 4, v5")
    a("s_waitcnt vmcnt(0) lgkmcnt(0)")
    stamp(a, 2)
    a("s_barrier")
    stamp(a, 3)
    CR, CI, CF, XO, YO, T = 20, 36, 60, 128, 144, 160
    a.label("k1_aux_cjob")
    a(f"s_mul_i32 s{sT0}, s{sJ}, 7282")
    a(f"s_lshr_b32 s{sT0}, s{sT0}, 16")
    a(f"s_mul_i32 s{sT1}, s{sT0}, 9")
    a(f"s_sub_u32 s{sT1}, s{sJ}, s{sT1}")
    a(f"s_lshl_b32 s{sT2}, s{sT1}, 9")
    a(f"s_add_u32 s{sT2}, s{sT2}, {COEF}")
    a(f"v_lshl_add_u32 v9, v7, 8, s{sT2}")
    a("s_waitcnt vmcnt(0)")
    for q in range(4):
        a(f"ds_read_b128 {vr(CR+4*q,4)}, v{12+q}")
        a(f"ds_read_b128 {vr(CI+4*q,4)}, v{12+q} offset:4096")
        for i in range(4 * q, 4 * q + 4):
            a(f"ds_read_b128 {vr(CF+4*i,4)}, v9 offset:{16*i}")
    for q in range(4):
        a(f"s_waitcnt lgkmcnt({min(15, 6*(3-q))})")
        for eo in range(2):
            for dw in range(2):
                src = 2 * eo + dw
                e0 = 8 * q + 2 * src
                a(f"v_lshlrev_b32 v{T}, 16, v{CR+4*q+src}")
                a(f"v_and_b32 v{T+1}, 0xffff0000, v{CR+4*q+src}")
                a(f"v_lshlrev_b32 v{T+2}, 16, v{CI+4*q+src}")
                a(f"v_and_b32 v{T+3}, 0xffff0000, v{CI+4*q+src}")
                for e in range(2):
                    cr, ci = CF + 2 * (e0 + e), CF + 2 * (e0 + e) + 1
                    a(f"v_mul_f32 v{T+4+e}, v{cr}, v{T+e}")
                    a(f"v_mul_f32 v{T+6+e}, v{ci}, v{T+e}")
                    a(f"v_fma_f32 v{T+4+e}, -v{ci}, v{T+2+e}, v{T+4+e}")
                    a(f"v_fma_f32 v{T+6+e}, -v{cr}, v{T+2+e}, -v{T+6+e}")
                base = YO if eo else XO
                m, pos = q >> 1, 2 * (q & 1) + dw
                a(f"v_cvt_pk_bf16_f32 v{base+0*8+4*m+pos}, v{T+4}, v{T+5}")
                a(f"v_cvt_pk_bf16_f32 v{base+1*8+4*m+pos}, v{T+6}, v{T+7}")
    a(f"s_mul_i32 s{sT2}, s{sT0}, 72")
    a(f"s_lshl_b32 s{sT3}, s{sT1}, 3")
    a(f"s_add_u32 s{sT2}, s{sT2}, s{sT3}")
    a(f"s_lshl_b32 s{sT2}, s{sT2}, 10")
    a(f"s_add_u32 s{sT4}, s{sT2}, {WS_CF}")
    a(f"s_add_u32 s{sT5}, s{sT4}, 4096")
    a(f"s_mov_b32 s{sK}, 0")
    a(f"s_cmp_lt_u32 s{sRB}, 9")
    a("s_cbranch_scc1 k1_aux_st")
    a(f"s_cmp_ge_u32 s{sJ}, 128")
    a("s_cbranch_scc1 k1_aux_st")
    a(f"s_add_u32 s{sJ}, s{sJ}, {128 - 72}")
    a(f"s_cmp_ge_u32 s{sJ}, 162")
    a("s_cbranch_scc1 k1_aux_st")
    a(f"s_mov_b32 s{sK}, 1")
    cjob_load()
    a.label("k1_aux_st")
    for i in range(16):
        a(f"v_permlane32_swap_b32 v{XO+i}, v{YO+i}")
    a("v_lshlrev_b32 v6, 4, v1")
    for i in range(4):
        a(f"buffer_store_dwordx4 {vr(XO+4*i,4)}, v6, {sr(S_WS,4)}, s{sT4} offen offset:{1024*i}")
        a(f"buffer_store_dwordx4 {vr(YO+4*i,4)}, v6, {sr(S_WS,4)}, s{sT5} offen offset:{1024*i}")
    a(f"s_cmp_eq_u32 s{sK}, 1")
    a("s_cbranch_scc1 k1_aux_cjob")
    a(f"s_cmp_ge_u32 s{sRB}, 9")
    a("s_cbranch_scc1 k1_fin")
    a("v_bfe_u32 v2, v1, 2, 2")
    a("v_lshrrev_b32 v3, 5, v1")
    a("v_bfe_u32 v4, v1, 4, 1")
    a("v_lshlrev_b32 v4, 5, v4")
    a("v_and_b32 v5, 3, v1")
    a("v_lshl_add_u32 v4, v5, 3, v4")
    a("v_lshl_add_u32 v5, v3, 2, v2")
    a("v_lshl_add_u32 v5, v5, 7, v4")
    a(f"s_mul_i32 s{sT0}, s{sW}, {4*18*128}")
    a(f"v_add_u32 v5, s{sT0}, v5")
    a("v_lshrrev_b32 v8, 1, v2")
    a("v_lshl_add_u32 v8, v3, 2, v8")
    a("v_mul_u32_u24 v8, 18, v8")
    a("v_and_b32 v7, 1, v2")
    a("v_add3_u32 v8, v8, v7, 16")
    a("v_lshl_add_u32 v8, v8, 7, v4")
    a(f"s_and_b32 s{sT1}, s{sW}, 3")
    a(f"s_lshr_b32 s{sT2}, s{sW}, 2")
    a(f"s_mul_i32 s{sT0}, s{sT1}, {8*18*128}")
    a(f"s_lshl_b32 s{sT3}, s{sT2}, 6")
    a(f"s_add_u32 s{sT0}, s{sT0}, s{sT3}")
    a(f"v_add_u32 v8, s{sT0}, v8")
    FR = 20
    for i in range(8):
        hd, ntl = i & 3, i >> 2
        off = hd * 18 * 128 + ntl * 64
        a(f"ds_read_b64_tr_b16 {vr(FR+4*i,2)}, v5 offset:{off}")
        a(f"ds_read_b64_tr_b16 {vr(FR+4*i+2,2)}, v5 offset:{off + 8*128}")
    a(f"ds_read_b64_tr_b16 {vr(FR+32,2)}, v8")
    a(f"ds_read_b64_tr_b16 {vr(FR+34,2)}, v8 offset:{36*128}")
    a(f"s_mul_i32 s{sT0}, s{sRB}, {2*36*1024}")
    a(f"s_add_u32 s{sT0}, s{sT0}, {WS_WOF}")
    a(f"s_lshl_b32 s{sT3}, s{sW}, 12")
    a(f"s_add_u32 s{sT3}, s{sT3}, s{sT0}")
    a(f"s_add_u32 s{sT4}, s{sT3}, {36*1024}")
    a(f"s_mul_i32 s{sT2}, s{sT2}, {36*1024}")
    a(f"s_add_u32 s{sT0}, s{sT0}, s{sT2}")
    a(f"s_lshl_b32 s{sT1}, s{sT1}, 10")
    a(f"s_add_u32 s{sT0}, s{sT0}, s{sT1}")
    a(f"s_add_u32 s{sT0}, s{sT0}, {32*1024}")
    a("s_waitcnt lgkmcnt(0)")
    for i in range(8):
        a(f"buffer_store_dwordx4 {vr(FR+4*i,4)}, v6, {sr(S_WS,4)}, s{sT3 if i < 4 else sT4} offen offset:{1024*(i&3)}")
    a(f"buffer_store_dwordx4 {vr(FR+32,4)}, v6, {sr(S_WS,4)}, s{sT0} offen")

def gen_k1():
    a = Asm()
    a("s_cmp_ge_u32 s2, 256")
    a("s_cbranch_scc1 k1_end")
    stamp_start(a)
    srd(a, S_X, KA_X, S * D * 2)
    a("v_lshrrev_b32 v2, 6, v0")
    a("v_and_b32 v1, 63, v0")
    a(f"v_readfirstlane_b32 s{sW}, v2")
    a(f"s_and_b32 s{sT0}, s2, 3")
    a(f"s_bfe_u32 s{sT1}, s2, 0x20003")
    a(f"s_lshl_b32 s{sRB}, s{sT0}, 2")
    a(f"s_add_u32 s{sRB}, s{sRB}, s{sT1}")
    a(f"s_bfe_u32 s{sT0}, s2, 0x10002")
    a(f"s_lshr_b32 s{sT1}, s2, 5")
    a(f"s_lshl_b32 s{sCT}, s{sT0}, 3")
    a(f"s_add_u32 s{sCT}, s{sCT}, s{sT1}")
    srd(a, S_WS, KA_WS, WS_SIZE)
    a(f"s_cmp_ge_u32 s{sCT}, 9")
    a("s_cbranch_scc1 k1_b")
    srd(a, S_W, KA_WQKV, D * 3 * D * 2)
    a(f"s_cmp_lt_u32 s{sW}, 4")
    a("s_cbranch_scc1 k1_w_cp")
    loader(a, "w")
    a.label("k1_b")
    srd(a, S_A, KA_LRE, D * 2)
    srd(a, S_B, KA_LIM, D * 2)
    srd(a, S_C, KA_LOGDT, D * 2)
    a(f"s_cmp_eq_u32 s{sCT}, 15")
    a("s_cbranch_scc1 k1_aux")
    srd(a, S_W, KA_BRE, D * D * 2)
    srd(a, S_W2, KA_BIM, D * D * 2)
    a(f"s_cmp_lt_u32 s{sW}, 4")
    a("s_cbranch_scc1 k1_b_cp")
    loader(a, "b")
    a.label("k1_w_cp")
    compute_w(a)
    a.label("k1_b_cp")
    compute_b(a)
    a.label("k1_aux")
    aux(a)
    a.label("k1_fin")
    fin(a)
    a.label("k1_end")
    a("s_endpgm")
    return a
```

```python
from common import *
import common

S_WS, S_X, S_DS, S_GW = 8, 24, 28, 32
sHead, sQB, sW, sCG, sTT, sQ4, sB = 3, 4, 5, 6, 12, 13, 14
sT0, sT1, sT2, sT3, sT4 = 16, 17, 18, 19, 20
sIt, sPass = 21, 22
LQ = 64 * KV_TS
LCNT = LQ + 9 * 1024
K2_LDS = LCNT + 64
U = 8
vLane16, vKA, vVA = 2, 4, 5
vQ, vQr = 8, 12
vK = [14, 20]
vV = [28, 36]
vP = 44
vS = [52, 68]
vO = 84
vNM = 100
sU, sP_, sLam, sL128, sL16, sE, sH, sBd, sA, sD = 8, 24, 26, 28, 30, 32, 64, 96, 104, 32

def diag(a, dst, val, shift, t0, t1):
    a(f"v_and_b32 v{t0}, 1, v1")
    a(f"v_cmp_eq_u32 vcc, 1, v{t0}")
    a(f"v_mov_b32 v{t0}, 0xffff")
    a(f"v_mov_b32 v{t1}, 0xffff0000")
    a(f"v_cndmask_b32 v{t0}, v{t0}, v{t1}, vcc")
    a(f"v_and_b32 v{val}, v{val}, v{t0}")
    a(f"v_and_b32 v{t0}, 31, v1")
    a(f"v_lshrrev_b32 v{t1}, 5, v1")
    a(f"v_lshlrev_b32 v{t1}, {shift}, v{t1}")
    a(f"v_sub_u32 v{t0}, v{t0}, v{t1}")
    a(f"v_lshrrev_b32 v{t0}, 1, v{t0}")
    for i in range(8):
        a(f"v_cmp_eq_u32 vcc, {i if shift == 4 else (i & 3) + 8 * (i >> 2)}, v{t0}")
        a(f"v_cndmask_b32 v{dst+i}, 0, v{val}, vcc")

def scan_loads(a, tag):
    a(f"s_lshr_b32 s{sB}, s{sTT}, 2")
    a(f"s_mul_i32 s{sT0}, s{sTT}, 18")
    a(f"s_add_u32 s{sT0}, s{sT0}, s{sCG}")
    a(f"s_lshl_b32 s{sT0}, s{sT0}, 12")
    a(f"s_add_u32 s{sT0}, s{sT0}, {WS_U}")
    a("v_and_b32 v60, 31, v1")
    a("v_lshlrev_b32 v61, 3, v60")
    a("v_lshrrev_b32 v62, 5, v1")
    a(f"v_mul_u32_u24 v62, {576*8}, v62")
    a("v_add_u32 v62, v62, v61")
    a(f"s_lshl_b32 s{sT1}, s{sCG}, 8")
    a(f"s_add_u32 s{sT2}, s{sT1}, {WS_T + 9*576*8}")
    a(f"s_add_u32 s{sT3}, s{sT1}, {WS_E}")
    a("s_waitcnt lgkmcnt(0)")
    a(f"buffer_load_dwordx2 {vr(sL128,2)}, v61, {sr(S_WS,4)}, s{sT2} offen")
    for i in range(15):
        a(f"s_cmp_le_u32 s{sB}, {i}")
        a(f"s_cbranch_scc1 k2_eld_done{tag}")
        a(f"buffer_load_dwordx2 {vr(sE+2*i,2)}, v61, {sr(S_WS,4)}, s{sT3} offen")
        if i < 14: a(f"s_add_u32 s{sT3}, s{sT3}, {576*8}")
    a.label(f"k2_eld_done{tag}")
    a(f"s_mul_i32 s{sT2}, s{sTT}, {2*576*8}")
    a(f"s_add_u32 s{sT2}, s{sT2}, s{sT1}")
    a(f"s_add_u32 s{sT2}, s{sT2}, {WS_P}")
    a(f"buffer_load_dwordx2 {vr(sP_,2)}, v62, {sr(S_WS,4)}, s{sT2} offen")
    a(f"s_and_b32 s{sT2}, s{sTT}, 3")
    a(f"s_mul_i32 s{sT2}, s{sT2}, {2*576*8}")
    a(f"s_add_u32 s{sT2}, s{sT2}, s{sT1}")
    a(f"s_add_u32 s{sT2}, s{sT2}, {WS_T}")
    a(f"buffer_load_dwordx2 {vr(sL16,2)}, v62, {sr(S_WS,4)}, s{sT2} offen")
    a(f"s_add_u32 s{sT2}, s{sT1}, {WS_T + 8*576*8}")
    a(f"buffer_load_dwordx2 {vr(sLam,2)}, v3, {sr(S_WS,4)}, s{sT2} offen")
    for q in range(4):
        a(f"buffer_load_dwordx4 {vr(sU+4*q,4)}, v{vLane16}, {sr(S_WS,4)}, s{sT0} offen offset:{1024*q}")

def scan_compute(a):
    a("v_mov_b32 v6, 0x3f803f80")
    diag(a, sBd, 6, 4, 7, 120)
    a(f"s_mul_i32 s{sT0}, s{sTT}, 72")
    a(f"s_lshl_b32 s{sT1}, s{sCG}, 2")
    a(f"s_add_u32 s{sT0}, s{sT0}, s{sT1}")
    a(f"s_lshl_b32 s{sT0}, s{sT0}, 10")
    a(f"s_add_u32 s{sT0}, s{sT0}, {WS_HF}")
    C = 120
    a(f"v_mov_b32 v{C}, 0")
    a(f"v_mov_b32 v{C+1}, 0")
    a("s_waitcnt vmcnt(7)")
    for i in range(15):
        a(f"s_cmp_le_u32 s{sB}, {i}")
        a("s_cbranch_scc1 k2_horner_done")
        pk_step(a, sE + 2 * i, sL128, C, sE + 2 * i)
        a(f"v_pk_mov_b32 {vr(C,2)}, {vr(sE+2*i,2)}, {vr(sE+2*i,2)} op_sel:[0,1]")
    a.label("k2_horner_done")
    a("s_waitcnt vmcnt(4)")
    pk_step(a, sP_, sL16, C, sP_)
    prev = sP_
    for r in range(16):
        if r % 4 == 0:
            a(f"s_waitcnt vmcnt({3 - r//4})")
            for rr in range(r, r + 4):
                a(f"v_lshlrev_b32 v{sH+2*rr}, 16, v{sU+rr}")
                a(f"v_and_b32 v{sH+2*rr+1}, 0xffff0000, v{sU+rr}")
        pk_step(a, sH + 2 * r, sLam, prev, sH + 2 * r)
        prev = sH + 2 * r
        if r & 1:
            a(f"v_cvt_pk_bf16_f32 v{sA+r//2}, v{sH+2*r-2}, v{sH+2*r}")
            a(f"v_cvt_pk_bf16_f32 v{sA+8+r//2}, v{sH+2*r-1}, v{sH+2*r+1}")
        if r == 8:
            for part in range(2):
                a(f"v_mfma_f32_32x32x16_bf16 {vr(sD+16*part,16)}, {vr(sA+8*part,4)}, {vr(sBd,4)}, 0")
    for part in range(2):
        a(f"v_mfma_f32_32x32x16_bf16 {vr(sD+16*part,16)}, {vr(sA+8*part+4,4)}, {vr(sBd+4,4)}, {vr(sD+16*part,16)}")
    for i in range(4):
        for j in range(4):
            a(f"v_cvt_pk_bf16_f32 v{sH+4*i+j}, v{sD+8*i+2*j}, v{sD+8*i+2*j+1}")
        a(f"buffer_store_dwordx4 {vr(sH+4*i,4)}, v{vLane16}, {sr(S_WS,4)}, s{sT0} offen offset:{1024*i} sc1")

def kreads(a, buf, areg, off):
    a(f"ds_read_b64_tr_b16 {vr(buf,2)}, v{areg} offset:{off}")
    a(f"ds_read_b64_tr_b16 {vr(buf+2,2)}, v{areg} offset:{off+64}")
    a(f"ds_read_b64_tr_b16 {vr(buf+4,2)}, v{areg} offset:{off+256}")

def vreads(a, buf, off):
    a(f"ds_read_b128 {vr(buf,4)}, v{vVA} offset:{off}")
    a(f"ds_read_b128 {vr(buf+4,4)}, v{vVA} offset:{off+608}")

def addr_init(a):
    a("v_bfe_u32 v6, v1, 4, 1")
    a("v_and_b32 v7, 1, v1")
    a("v_lshl_add_u32 v6, v6, 1, v7")
    a("v_mul_u32_u24 v6, 288, v6")
    a("v_lshrrev_b32 v7, 5, v1")
    a("v_lshl_add_u32 v6, v7, 7, v6")
    a(f"v_mul_u32_u24 v{vVA}, 304, v7")
    a("v_bfe_u32 v7, v1, 2, 2")
    a("v_lshl_add_u32 v6, v7, 4, v6")
    a("v_bfe_u32 v7, v1, 1, 1")
    a(f"v_lshl_add_u32 v{vKA}, v7, 3, v6")
    a("v_and_b32 v7, 31, v1")
    a(f"v_lshl_add_u32 v{vVA}, v7, 4, v{vVA}")
    a(f"v_add_u32 v{vVA}, 1152, v{vVA}")

def helper(a):
    sHW, sNT, sNJ, sA_, sB_ = 36, 37, 38, 39, 40
    a(f"s_sub_u32 s{sHW}, s{sW}, 8")
    a(f"s_mul_i32 s{sT0}, s{sHead}, {KV_HS}")
    a(f"s_lshl_b32 s{sT1}, s{sHW}, 10")
    a(f"s_add_u32 s{sT0}, s{sT0}, s{sT1}")
    a(f"s_add_u32 s{sT0}, s{sT0}, {WS_KV}")
    a(f"s_mul_i32 s{sT3}, s{sHead}, {Q_HS}")
    a(f"s_mul_i32 s{sT4}, s{sQB}, {8*Q_TS}")
    a(f"s_add_u32 s{sT3}, s{sT3}, s{sT4}")
    a("s_waitcnt lgkmcnt(0)")
    def piece(i):
        a(f"s_add_u32 m0, s{sT1}, {i*4096}")
        a(f"s_add_u32 s{sT2}, s{sT0}, {i*4096}")
        a(f"buffer_load_dwordx4 v{vLane16}, {sr(S_WS,4)}, s{sT2} offen lds")
    piece(0)
    for i in range(3):
        if i < 2:
            a(f"s_add_u32 m0, s{sT1}, {LQ + i*4096}")
            a(f"s_add_u32 s{sT2}, s{sT3}, s{sT1}")
            if i or WS_Q: a(f"s_add_u32 s{sT2}, s{sT2}, {WS_Q + i*4096}")
        else:
            a(f"s_mov_b32 m0, {LQ + 8192}")
            a(f"s_add_u32 s{sT2}, s{sT3}, {WS_Q + 8192}")
        a(f"buffer_load_dwordx4 v{vLane16}, {sr(S_WS,4)}, s{sT2} offen lds")
    for i in range(1, 6): piece(i)
    NA = opt("na", 8)
    for i in range(6, 6 + NA): piece(i)
    a(f"v_mov_b32 v3, {LCNT}")
    a("v_mov_b32 v4, 0")
    a("ds_write_b32 v3, v4")
    stamp(a, 1)
    a(f"s_waitcnt vmcnt({NA}) lgkmcnt(0)")
    stamp(a, 2)
    a("s_barrier")
    for i in range(6 + NA, 37): piece(i)
    srd(a, S_X, KA_X, S * D * 2)
    srd(a, S_DS, KA_DSKIP, D * 2)
    srd(a, S_GW, KA_GW, D * 2)
    a(f"s_mul_i32 s{sCG}, s{sQ4}, 9")
    a(f"s_add_u32 s{sCG}, s{sCG}, 1")
    a(f"s_lshr_b32 s{sCG}, s{sCG}, 1")
    a(f"s_add_u32 s{sCG}, s{sCG}, s{sHW}")
    a(f"s_and_b32 s{sNJ}, s{sQ4}, 1")
    a(f"s_lshl_b32 s{sNJ}, s{sNJ}, 2")
    a(f"s_add_u32 s{sNJ}, s{sNJ}, s{sHW}")
    a("v_and_b32 v63, 31, v1")
    a("v_lshlrev_b32 v3, 3, v63")
    scan_loads(a, "a")
    stamp(a, 3)
    a("s_waitcnt vmcnt(8)")
    a("s_barrier")
    a("s_setprio 3")
    stamp(a, 4)
    if opt("nojob"):
        stamp_flush(a, 5, 1, S_WS, sW, 140)
        a("s_endpgm")
    a.label("k2_h_scan")
    scan_compute(a)
    a(f"s_cmp_lg_u32 s{sNJ}, 2")
    a("s_cbranch_scc1 k2_h_scandone")
    a(f"s_mov_b32 s{sNJ}, 0")
    a(f"s_add_u32 s{sCG}, s{sCG}, 2")
    scan_loads(a, "b")
    a("s_branch k2_h_scan")
    a.label("k2_h_scandone")
    a(f"s_mul_i32 s{sNT}, s{sQ4}, 9")
    a(f"s_lshr_b32 s{sNT}, s{sNT}, 1")
    a(f"s_add_u32 s{sNT}, s{sNT}, s{sHW}")
    a(f"s_and_b32 s{sNJ}, s{sQ4}, 1")
    a(f"s_cmp_eq_u32 s{sHW}, 1")
    a(f"s_cselect_b32 s{sNJ}, s{sNJ}, 0")
    a(f"s_lshl_b32 s{sT4}, s{sTT}, 8")
    a(f"s_add_u32 s{sT4}, s{sT4}, {WS_CNT}")
    a(f"v_mov_b32 v3, {LCNT}")
    a("v_mov_b32 v4, 1")
    a("s_mov_b64 exec, 1")
    a("s_waitcnt vmcnt(0)")
    a("ds_add_rtn_u32 v5, v3, v4")
    a("v_mov_b32 v3, 0")
    a("s_waitcnt lgkmcnt(0)")
    a(f"v_readfirstlane_b32 s{sT0}, v5")
    a(f"s_cmp_lg_u32 s{sT0}, 3")
    a("s_cbranch_scc1 k2_h_nosig")
    a(f"buffer_atomic_add v4, v3, {sr(S_WS,4)}, s{sT4} offen sc1")
    a.label("k2_h_nosig")
    a("s_mov_b64 exec, -1")
    a("v_mov_b32 v3, 0")
    stamp(a, 5)
    a(f"s_mov_b32 s{sIt}, 0")
    a.label("k2_h_poll")
    a(f"buffer_load_dword v4, v3, {sr(S_WS,4)}, s{sT4} offen sc1")
    a(f"s_add_u32 s{sIt}, s{sIt}, 1")
    a("s_waitcnt vmcnt(0)")
    a(f"v_readfirstlane_b32 s{sT0}, v4")
    a(f"s_cmp_ge_u32 s{sT0}, 4")
    a("s_cbranch_scc1 k2_h_job")
    a("s_sleep 8")
    a(f"s_cmp_lt_u32 s{sIt}, 0x200000")
    a("s_cbranch_scc1 k2_h_poll")
    a.label("k2_h_job")
    stamp(a, 6)
    if opt("scanonly"):
        stamp_flush(a, 7, 1, S_WS, sW, 140)
        a("s_endpgm")
    a(f"s_setprio {opt('jprio', 3)}")
    R = opt("ring", 12)
    vAcc, vXf, vDg, vRing = 8, 24, 32, 40
    a(f"s_mul_i32 s{sA_}, s{sTT}, {72*1024}")
    a(f"s_add_u32 s{sA_}, s{sA_}, {WS_HF}")
    a(f"s_mul_i32 s{sB_}, s{sNT}, {72*1024}")
    a(f"s_add_u32 s{sB_}, s{sB_}, {WS_CF}")
    a("v_and_b32 v5, 31, v1")
    a("v_lshlrev_b32 v6, 1, v5")
    a(f"s_lshl_b32 s{sT0}, s{sNT}, 6")
    a(f"buffer_load_ushort v7, v6, {sr(S_DS,4)}, s{sT0} offen")
    a("v_mul_u32_u24 v5, 1152, v5")
    a("v_lshrrev_b32 v6, 5, v1")
    a("v_lshl_add_u32 v5, v6, 4, v5")
    a(f"s_mul_i32 s{sT1}, s{sTT}, {32*1152}")
    a(f"s_add_u32 s{sT1}, s{sT1}, s{sT0}")
    a(f"buffer_load_dwordx4 {vr(vXf,4)}, v5, {sr(S_X,4)}, s{sT1} offen")
    a(f"buffer_load_dwordx4 {vr(vXf+4,4)}, v5, {sr(S_X,4)}, s{sT1} offen offset:32")
    def issue(j):
        B = vRing + 8 * (j % R)
        a(f"buffer_load_dwordx4 {vr(B,4)}, v{vLane16}, {sr(S_WS,4)}, s{sA_} offen offset:{(j%4)*1024} sc1")
        a(f"buffer_load_dwordx4 {vr(B+4,4)}, v{vLane16}, {sr(S_WS,4)}, s{sB_} offen offset:{(j%4)*1024}")
        if j % 4 == 3:
            a(f"s_add_u32 s{sA_}, s{sA_}, 4096")
            a(f"s_add_u32 s{sB_}, s{sB_}, 4096")
    for j in range(R): issue(j)
    a(f"s_waitcnt vmcnt({2*R})")
    a("v_lshl_or_b32 v7, v7, 16, v7")
    diag(a, vDg, 7, 3, 5, 6)
    a(f"v_mfma_f32_32x32x16_bf16 {vr(vAcc,16)}, {vr(vXf,4)}, {vr(vDg,4)}, 0")
    a(f"v_mfma_f32_32x32x16_bf16 {vr(vAcc,16)}, {vr(vXf+4,4)}, {vr(vDg+4,4)}, {vr(vAcc,16)}")
    for j in range(72):
        B = vRing + 8 * (j % R)
        a(f"s_waitcnt vmcnt({2*(min(72, j+R) - j - 1)})")
        if not opt("jobnomfma"): a(f"v_mfma_f32_32x32x16_bf16 {vr(vAcc,16)}, {vr(B,4)}, {vr(B+4,4)}, {vr(vAcc,16)}")
        if j + R < 72: issue(j + R)
    a(f"s_mul_i32 s{sT0}, s{sTT}, 18")
    a(f"s_add_u32 s{sT0}, s{sT0}, s{sNT}")
    a(f"s_lshl_b32 s{sT0}, s{sT0}, 12")
    a(f"s_add_u32 s{sT0}, s{sT0}, {WS_Y}")
    for g in range(4):
        a(f"buffer_store_dwordx4 {vr(vAcc+4*g,4)}, v{vLane16}, {sr(S_WS,4)}, s{sT0} offen offset:{1024*g}")
    a(f"s_add_u32 s{sNT}, s{sNT}, 3")
    a(f"s_cmp_eq_u32 s{sNJ}, 1")
    a(f"s_mov_b32 s{sNJ}, 0")
    a("s_cbranch_scc1 k2_h_job")
    a(f"s_cmp_lg_u32 s{sHW}, 3")
    a("s_cbranch_scc1 k2_h_nogate")
    a("v_lshrrev_b32 v5, 3, v1")
    a("s_lshl_b32 s41, s2, 3")
    a("v_add_u32 v5, s41, v5")
    a("v_and_b32 v4, 7, v1")
    a("v_lshlrev_b32 v4, 4, v4")
    a("v_mul_u32_u24 v3, 1152, v5")
    a("v_add_u32 v3, v3, v4")
    for i in range(9):
        a(f"buffer_load_dwordx4 {vr(8+4*i,4)}, v4, {sr(S_GW,4)}, 0 offen offset:{128*i}")
        a(f"buffer_load_dwordx4 {vr(44+4*i,4)}, v3, {sr(S_X,4)}, 0 offen offset:{128*i}")
    a("v_mov_b32 v6, 0")
    a("s_waitcnt vmcnt(0)")
    for i in range(36):
        a(f"v_dot2_f32_bf16 v6, v{8+i}, v{44+i}, v6")
    a("v_add_f32_dpp v6, v6, v6 quad_perm:[1,0,3,2] row_mask:0xf bank_mask:0xf")
    a("v_add_f32_dpp v6, v6, v6 quad_perm:[2,3,0,1] row_mask:0xf bank_mask:0xf")
    a("v_add_f32_dpp v6, v6, v6 row_half_mirror row_mask:0xf bank_mask:0xf")
    a(f"v_mul_f32 v6, {f32(-LOG2E)}, v6")
    a("v_exp_f32 v6, v6")
    a("v_add_f32 v6, 1.0, v6")
    a("v_rcp_f32 v6, v6")
    a("v_lshlrev_b32 v5, 2, v5")
    a(f"s_mov_b32 s41, {WS_G}")
    a("s_mov_b32 exec_lo, 0x01010101")
    a("s_mov_b32 exec_hi, 0x01010101")
    a(f"buffer_store_dword v6, v5, {sr(S_WS,4)}, s41 offen")
    a("s_mov_b64 exec, -1")
    a.label("k2_h_nogate")
    if common.PROF:
        a("s_waitcnt vmcnt(0)")
        stamp(a, 7)
        stamp_flush(a, 8, 1, S_WS, sW, 140)
    a("s_endpgm")

def gen_k2():
    a = Asm()
    a("s_cmp_ge_u32 s2, 256")
    a("s_cbranch_scc1 k2_end")
    stamp_start(a)
    srd(a, S_WS, KA_WS, WS_SIZE)
    a("v_lshrrev_b32 v2, 6, v0")
    a("v_and_b32 v1, 63, v0")
    a(f"v_readfirstlane_b32 s{sW}, v2")
    a(f"v_lshlrev_b32 v{vLane16}, 4, v1")
    a(f"s_and_b32 s{sHead}, s2, 31")
    a(f"s_lshr_b32 s{sQB}, s2, 5")
    a(f"s_and_b32 s{sTT}, s2, 7")
    a(f"s_lshl_b32 s{sTT}, s{sTT}, 3")
    a(f"s_add_u32 s{sTT}, s{sTT}, s{sQB}")
    a(f"s_bfe_u32 s{sQ4}, s2, 0x20003")
    a(f"s_cmp_lt_u32 s{sW}, 8")
    a("s_cbranch_scc1 k2_att")
    helper(a)
    a.label("k2_att")
    addr_init(a)
    for r in range(16): a(f"v_mov_b32 v{vNM+r}, 0")
    a(f"s_mov_b32 s{sPass}, 0")
    a(f"s_mul_i32 s{sT0}, s{sW}, {Q_TS}")
    a(f"s_add_u32 s{sT0}, s{sT0}, {LQ}")
    a(f"v_add_u32 v6, s{sT0}, v{vKA}")
    stamp(a, 2)
    a("s_waitcnt lgkmcnt(0)")
    a("s_barrier")
    stamp(a, 3)
    kreads(a, vQ, 6, 0)
    a.label("k2_pass")
    kreads(a, vK[0], vKA, 0)
    kreads(a, vK[1], vKA, KV_TS)
    vreads(a, vV[0], 0)
    for r in range(16): a(f"v_mov_b32 v{vO+r}, 0")
    for r in range(4):
        a(f"v_mov_b32 v{vV[1]+4+r}, 0")
        a(f"v_mov_b32 v{vP+4+r}, 0")
    a(f"s_mov_b32 s{sIt}, 0")
    a("s_waitcnt lgkmcnt(5)")
    a(f"v_mov_b32 v{vQr+1}, 0")
    a("s_mov_b32 exec_lo, 0")
    a(f"v_mov_b32 v{vQr}, 0")
    a("s_mov_b32 exec_lo, -1")
    a(f"v_mfma_f32_32x32x16_bf16 {vr(vS[0],16)}, {vr(vK[0],4)}, {vr(vQ,4)}, {vr(vNM,16)}")
    a(f"v_mfma_f32_32x32x8_bf16 {vr(vS[0],16)}, {vr(vK[0]+4,2)}, {vr(vQr,2)}, {vr(vS[0],16)}")
    PR = opt("prio", 1)
    if PR == 2:
        a(f"s_cmp_ge_u32 s{sW}, 4")
        a("s_cbranch_scc0 k2_noprio")
        a("s_setprio 1")
        a.label("k2_noprio")
    a(".p2align 3")
    a.label("k2_loop")
    for j in range(U):
        c, n = j & 1, (j + 1) & 1
        Sc, Sn = vS[c], vS[n]
        ex = lambda r: a(f"v_exp_f32 v{Sc+r}, v{Sc+r}")
        cv = lambda k: a(f"v_cvt_pk_bf16_f32 v{vP+k}, v{Sc+2*k}, v{Sc+2*k+1}")
        a("s_waitcnt lgkmcnt(0)")
        if PR == 1: a("s_setprio 0")
        if not opt("noread") or j == 0: kreads(a, vK[c], vKA, (j + 2) * KV_TS)
        a(f"v_mfma_f32_32x32x16_bf16 {vr(vO,16)}, {vr(vV[n]+4,4)}, {vr(vP+4,4)}, {vr(vO,16)}")
        if not opt("noread") or j == 0: vreads(a, vV[n], (j + 1) * KV_TS)
        for r in range(5): ex(r)
        if PR == 1: a("s_setprio 1")
        a(f"v_mfma_f32_32x32x16_bf16 {vr(Sn,16)}, {vr(vK[n],4)}, {vr(vQ,4)}, {vr(vNM,16)}")
        for r in range(5, 8): ex(r)
        for k in range(4): cv(k)
        a(f"v_mfma_f32_32x32x8_bf16 {vr(Sn,16)}, {vr(vK[n]+4,2)}, {vr(vQr,2)}, {vr(Sn,16)}")
        for r in range(8, 13): ex(r)
        a(f"v_mfma_f32_32x32x16_bf16 {vr(vO,16)}, {vr(vV[c],4)}, {vr(vP,4)}, {vr(vO,16)}")
        for r in range(13, 16): ex(r)
        for k in range(4, 8): cv(k)
    a(f"v_add_u32 v{vKA}, {U*KV_TS}, v{vKA}")
    a(f"v_add_u32 v{vVA}, {U*KV_TS}, v{vVA}")
    a(f"s_or_b32 s{sT0}, s{sIt}, s{sPass}")
    a(f"s_add_u32 s{sIt}, s{sIt}, 1")
    a(f"s_cmp_lg_u32 s{sT0}, 0")
    a("s_cbranch_scc1 k2_nobar")
    stamp(a, 4)
    a("s_barrier")
    stamp(a, 5)
    a.label("k2_nobar")
    a(f"s_cmp_lt_u32 s{sIt}, {64//U}")
    a("s_cbranch_scc1 k2_loop")
    a(f"v_mfma_f32_32x32x16_bf16 {vr(vO,16)}, {vr(vV[1]+4,4)}, {vr(vP+4,4)}, {vr(vO,16)}")
    a(f"v_add_u32 v{vKA}, {(-64*KV_TS) & 0xffffffff}, v{vKA}")
    a(f"v_add_u32 v{vVA}, {(-64*KV_TS) & 0xffffffff}, v{vVA}")
    a("s_waitcnt lgkmcnt(0)")
    stamp(a, 6)
    a(f"v_mov_b32 v6, v{vO+10}")
    a(f"v_mov_b32 v7, v{vO+10}")
    a("v_permlane32_swap_b32 v6, v7")
    a(f"s_cmp_lg_u32 s{sPass}, 0")
    a("s_cbranch_scc1 k2_fin")
    a("v_mov_b32 v7, 0")
    for r in range(8): a(f"v_fmac_f32 v7, 0, v{vO+r}")
    a("s_mov_b32 exec_hi, 0")
    for r in range(8, 10): a(f"v_fmac_f32 v7, 0, v{vO+r}")
    a("s_mov_b32 exec_hi, -1")
    a("v_add_f32 v7, v7, v6")
    a(f"s_mov_b32 s{sT0}, {f32(2.0**-16)}")
    a(f"s_mov_b32 s{sT1}, {f32(2.0**64)}")
    a(f"v_cmp_nle_f32 vcc, s{sT0}, v7")
    a(f"v_cmp_nge_f32 s[24:25], s{sT1}, v7")
    a("s_or_b64 vcc, vcc, s[24:25]")
    a("s_cbranch_vccz k2_fin")
    M = vP
    a(f"v_mov_b32 v{M}, 0xff800000")
    a(f"v_mov_b32 v6, v{vKA}")
    a(f"s_mov_b32 s{sIt}, 0")
    a.label("k2_max")
    kreads(a, vK[0], 6, 0)
    a(f"v_add_u32 v6, {KV_TS}, v6")
    a("s_waitcnt lgkmcnt(0)")
    a(f"v_mfma_f32_32x32x16_bf16 {vr(vS[0],16)}, {vr(vK[0],4)}, {vr(vQ,4)}, 0")
    a(f"v_mfma_f32_32x32x8_bf16 {vr(vS[0],16)}, {vr(vK[0]+4,2)}, {vr(vQr,2)}, {vr(vS[0],16)}")
    a(f"s_add_u32 s{sIt}, s{sIt}, 1")
    for k in range(8):
        a(f"v_max3_f32 v{M}, v{M}, v{vS[0]+2*k}, v{vS[0]+2*k+1}")
    a(f"s_cmp_lt_u32 s{sIt}, 64")
    a("s_cbranch_scc1 k2_max")
    a(f"v_mov_b32 v6, v{M}")
    a(f"v_permlane32_swap_b32 v6, v{M}")
    a(f"v_max_f32 v6, v6, v{M}")
    for r in range(16): a(f"v_sub_f32 v{vNM+r}, 0, v6")
    a(f"s_mov_b32 s{sPass}, 1")
    a("s_branch k2_pass")
    a.label("k2_fin")
    a("v_rcp_f32 v6, v6")
    a(f"s_lshl_b32 s{sT0}, s{sQB}, 3")
    a(f"s_add_u32 s{sT0}, s{sT0}, s{sW}")
    a(f"s_mul_i32 s{sT0}, s{sT0}, {36*1024}")
    a(f"s_add_u32 s{sT0}, s{sT0}, {WS_OF}")
    a(f"s_lshl_b32 s{sT1}, s{sHead}, 10")
    a(f"s_add_u32 s{sT1}, s{sT1}, s{sT0}")
    for r in range(10): a(f"v_mul_f32 v{vO+r}, v6, v{vO+r}")
    for k in range(5): a(f"v_cvt_pk_bf16_f32 v{vP+k}, v{vO+2*k}, v{vO+2*k+1}")
    a(f"buffer_store_dwordx4 {vr(vP,4)}, v{vLane16}, {sr(S_WS,4)}, s{sT1} offen")
    a(f"s_lshr_b32 s{sT1}, s{sHead}, 2")
    a(f"s_lshl_b32 s{sT1}, s{sT1}, 9")
    a(f"s_and_b32 s{sT2}, s{sHead}, 3")
    a(f"s_lshl_b32 s{sT2}, s{sT2}, 2")
    a(f"s_add_u32 s{sT0}, s{sT0}, s{sT1}")
    a(f"s_add_u32 s{sT0}, s{sT0}, s{sT2}")
    a(f"s_add_u32 s{sT0}, s{sT0}, {32*1024}")
    a("s_mov_b32 exec_hi, 0")
    a(f"buffer_store_dword v{vP+4}, v{vLane16}, {sr(S_WS,4)}, s{sT0} offen")
    if common.PROF:
        a("s_waitcnt vmcnt(0)")
        stamp(a, 7)
        stamp_flush(a, 8, 1, S_WS, sW, 124)
    a.label("k2_end")
    a("s_endpgm")
    return a
```

```python
from common import *
import common

S_WS, S_OUT = 8, 20
sW, sRB, sNB = 3, 4, 5
sA0, sA1, sB0, sB1, sB2 = 24, 25, 26, 27, 28
sT0, sT1, sT2 = 30, 31, 32
NS = 9
DEPTH = 6
vL16 = 2
vY = 4
vG = 28
vE = 36
vBUF = 40
vAC = vBUF + 20 * DEPTH
K3_LDS = 4 * 24 * 1024

def gen_k3():
    a = Asm()
    a("s_cmp_ge_u32 s2, 192")
    a("s_cbranch_scc1 k3_end")
    stamp_start(a)
    srd(a, S_WS, KA_WS, WS_SIZE)
    srd(a, S_OUT, KA_OUT, S * D * 4)
    a("v_lshrrev_b32 v2, 6, v0")
    a("v_and_b32 v1, 63, v0")
    a(f"v_readfirstlane_b32 s{sW}, v2")
    a(f"v_lshlrev_b32 v{vL16}, 4, v1")
    a(f"s_and_b32 s{sT0}, s2, 7")
    a(f"s_bfe_u32 s{sT1}, s2, 0x20003")
    a(f"s_lshl_b32 s{sRB}, s{sT0}, 2")
    a(f"s_add_u32 s{sRB}, s{sRB}, s{sT1}")
    a(f"s_lshr_b32 s{sNB}, s2, 5")
    a(f"s_mul_i32 s{sT0}, s{sW}, {NS*1024}")
    a(f"s_mul_i32 s{sA0}, s{sRB}, {2*36*1024}")
    a(f"s_add_u32 s{sA0}, s{sA0}, s{sT0}")
    a(f"s_add_u32 s{sA0}, s{sA0}, {WS_OF}")
    a(f"s_add_u32 s{sA1}, s{sA0}, {36*1024}")
    a(f"s_mul_i32 s{sB0}, s{sNB}, {3*36*1024}")
    a(f"s_add_u32 s{sB0}, s{sB0}, s{sT0}")
    a(f"s_add_u32 s{sB0}, s{sB0}, {WS_WOF}")
    a(f"s_add_u32 s{sB1}, s{sB0}, {36*1024}")
    a(f"s_add_u32 s{sB2}, s{sB1}, {36*1024}")
    a("s_waitcnt lgkmcnt(0)")
    def issue(j):
        B = vBUF + 20 * (j % DEPTH)
        for i, s in enumerate((sA0, sB0, sA1, sB1, sB2)):
            slot = (0, 2, 1, 3, 4)[i]
            a(f"buffer_load_dwordx4 {vr(B+4*slot,4)}, v{vL16}, {sr(S_WS,4)}, s{s} offen offset:{(j%4)*1024}")
        if j % 4 == 3:
            for s in (sA0, sA1, sB0, sB1, sB2): a(f"s_add_u32 s{s}, s{s}, 4096")
    def epi_loads():
        a(f"s_mul_i32 s{sT0}, s{sRB}, {2*18}")
        a(f"s_mul_i32 s{sT1}, s{sNB}, 3")
        a(f"s_add_u32 s{sT0}, s{sT0}, s{sT1}")
        a(f"s_lshl_b32 s{sT0}, s{sT0}, 2")
        a(f"s_add_u32 s{sT0}, s{sT0}, s{sW}")
        a(f"s_lshl_b32 s{sT0}, s{sT0}, 10")
        a(f"s_add_u32 s{sT0}, s{sT0}, {WS_Y}")
        for t in range(6):
            a(f"buffer_load_dwordx4 {vr(vY+4*t,4)}, v{vL16}, {sr(S_WS,4)}, s{sT0} offen")
            if t < 5: a(f"s_add_u32 s{sT0}, s{sT0}, {4096 if t != 2 else 16*4096}")
        a("v_lshrrev_b32 v3, 5, v1")
        a(f"s_lshl_b32 s{sT0}, s{sRB}, 6")
        a(f"s_lshl_b32 s{sT1}, s{sW}, 3")
        a(f"s_add_u32 s{sT0}, s{sT0}, s{sT1}")
        a(f"v_lshl_add_u32 v3, v3, 2, s{sT0}")
        a(f"v_mul_u32_u24 v{vE}, 576, v3")
        a(f"s_mul_i32 s{sT1}, s{sNB}, 96")
        a(f"v_and_b32 v{vE+1}, 31, v1")
        a(f"v_add3_u32 v{vE}, v{vE}, v{vE+1}, s{sT1}")
        a(f"v_lshlrev_b32 v{vE}, 2, v{vE}")
        a("v_lshlrev_b32 v3, 2, v3")
        a(f"s_mov_b32 s{sT2}, {WS_G}")
        for aa in range(2):
            a(f"buffer_load_dwordx4 {vr(vG+4*aa,4)}, v3, {sr(S_WS,4)}, s{sT2} offen offset:{128*aa}")
    for j in range(DEPTH): issue(j)
    stamp(a, 1)
    for j in range(NS):
        if j == 1: stamp(a, 2)
        newer = min(NS, j + DEPTH) - (j + 1)
        a(f"s_waitcnt vmcnt({5 * newer + (8 if j >= NS - DEPTH else 0)})")
        B = vBUF + 20 * (j % DEPTH)
        for aa in range(2):
            for b in range(3):
                acc = vAC + 16 * (3 * aa + b)
                a(f"v_mfma_f32_32x32x16_bf16 {vr(acc,16)}, {vr(B+4*aa,4)}, {vr(B+8+4*b,4)}, {'0' if j == 0 else vr(acc,16)}")
        if j + DEPTH < NS: issue(j + DEPTH)
        if j + DEPTH == NS - 1: epi_loads()
    stamp(a, 3)
    a(f"s_mul_i32 s{sT0}, s{sW}, {24*1024}")
    a(f"v_add_u32 v3, s{sT0}, v{vL16}")
    for t in range(6):
        for g in range(4):
            a(f"ds_write_b128 v3, {vr(vAC+16*t+4*g,4)} offset:{(g*6+t)*1024}")
    a(f"s_mul_i32 s{sT0}, s{sW}, {6*1024}")
    a(f"v_add_u32 v3, s{sT0}, v{vL16}")
    a(f"v_add_u32 v1, {48*1024}, v3")
    sR = [0, 33, 34, 35, 36, 37, 38, 39]
    for k in range(1, 8):
        a(f"s_mov_b32 s{sR[k]}, {((k >> 2) * 32 + (k & 3)) * 2304}")
    a("s_waitcnt lgkmcnt(0)")
    a("s_barrier")
    stamp(a, 4)
    R = vBUF
    def rd(t):
        for src in range(4):
            a(f"ds_read_b128 {vr(R+16*t+4*src,4)}, v{3 if src < 2 else 1} offset:{(src&1)*24*1024 + t*1024}")
    rd(0); rd(1); rd(2)
    a("s_waitcnt vmcnt(0)")
    for t in range(6):
        a(f"s_waitcnt lgkmcnt({4*min(2, 5-t)})")
        if t + 3 < 6: rd(t + 3)
        aa, b = t // 3, t % 3
        q = R + 16 * t
        for h in range(2):
            a(f"v_pk_add_f32 {vr(q+2*h,2)}, {vr(q+2*h,2)}, {vr(q+4+2*h,2)}")
            a(f"v_pk_add_f32 {vr(q+8+2*h,2)}, {vr(q+8+2*h,2)}, {vr(q+12+2*h,2)}")
        for h in range(2):
            a(f"v_pk_add_f32 {vr(q+2*h,2)}, {vr(q+2*h,2)}, {vr(q+8+2*h,2)}")
        for h in range(2):
            a(f"v_pk_add_f32 {vr(q+2*h,2)}, {vr(q+2*h,2)}, {vr(vY+4*t+2*h,2)} neg_lo:[0,1] neg_hi:[0,1]")
        for h in range(2):
            a(f"v_pk_fma_f32 {vr(q+2*h,2)}, {vr(q+2*h,2)}, {vr(vG+4*aa+2*h,2)}, {vr(vY+4*t+2*h,2)}")
        for i in range(4):
            k = 4 * aa + i
            a(f"buffer_store_dword v{q+i}, v{vE}, {sr(S_OUT,4)}, {'0' if k == 0 else 's%d' % sR[k]} offen offset:{128*b}")
    if common.PROF:
        stamp(a, 5)
        a("s_waitcnt vmcnt(0)")
        stamp(a, 6)
        stamp_flush(a, 7, 2, S_WS, sW)
    a.label("k3_end")
    a("s_endpgm")
    return a
```

```python
import sys
from asmtool import fix_hazards, max_regs
from common import *
import k1, k2, k3

NAME = "gated_mix__mha_block__ssm_conv_s5__prompt"
def build(out, verbose=False):
    ref = open("cdna_kernels/" + NAME + ".s.ref").read().split("\n")
    head = [l for l in ref if l.startswith(";") and "@launch" not in l and "Override launch" not in l and "grid=ceil" not in l]
    ks = [("k1_kernel", k1.gen_k1(), 256, 512, 163840),
          ("k2_kernel", k2.gen_k2(), 256, 768, k2.K2_LDS),
          ("k3_kernel", k3.gen_k3(), 192, 256, k3.K3_LDS)]
    txt = "\n".join(head) + "\n"
    for n, _, g, b, lds in ks:
        txt += f"; @launch kernel={n} grid=({g},1,1) block=({b},1,1) lds={lds}\n"
    txt += '.amdgcn_target "amdgcn-amd-amdhsa--gfx950"\n.text\n'
    for n, a, g, b, lds in ks:
        body, nfix = fix_hazards(a.text(), verbose)
        v, s, ag = max_regs(body)
        acc = (v + 3) // 4 * 4
        nv = acc + ag if ag else v
        print(f"{n}: {len(body.splitlines())} lines, {nfix} nops added, vgpr {v} agpr {ag} sgpr {s}", file=sys.stderr)
        txt += f".globl {n}\n.p2align 8\n.type {n},@function\n{n}:\n" + body + kernel_footer(n, nv, max(s, 16), acc)
    open(out, "w").write(txt)

if __name__ == "__main__":
    import common
    for x in sys.argv[2:]:
        if "=" in x:
            k, v = x.split("="); common.OPT[k] = int(v) if v.lstrip("-").isdigit() else v.replace("_", " ")
    if "--prof" in sys.argv:
        import common; common.set_prof(True)
    build(sys.argv[1] if len(sys.argv) > 1 else "cdna_kernels/" + NAME + ".s", "-v" in sys.argv)
```

```python
import struct, math
from asmtool import Asm, vr, ar, sr

def f32(x):
    return "0x%08x" % struct.unpack("<I", struct.pack("<f", x))[0]

S, D, H, DH = 2048, 576, 32, 18
LOG2E = math.log2(math.e)
QSCALE = LOG2E / math.sqrt(DH)
INV2PI = 1.0 / (2 * math.pi)

KA_X, KA_WQKV, KA_WO, KA_BX, KA_LRE, KA_LIM, KA_BRE, KA_BIM, KA_CRE, KA_CIM, KA_LOGDT, KA_DSKIP, KA_GW, KA_OUT, KA_DBG, KA_WS = [8 * i for i in range(16)]

QK_RS, V_RS = 576 * 16, 584 * 16
WS_Q = 0
WS_K = WS_Q + 256 * QK_RS
WS_V = WS_K + 256 * QK_RS
WS_U = WS_V + 256 * V_RS
WS_OF = WS_U + 64 * 18 * 4096
WS_HF = WS_OF + 64 * 36 * 1024
WS_WOF = WS_HF + 64 * 72 * 1024
WS_CF = WS_WOF + 18 * 36 * 1024
WS_Y = WS_CF + 18 * 72 * 1024
WS_P = WS_Y + 64 * 18 * 4096
WS_E = WS_P + 128 * 576 * 8
WS_T = WS_E + 16 * 576 * 8
WS_G = WS_T + 10 * 576 * 8
WS_CNT = (WS_G + 2048 * 4 + 255) // 256 * 256
WS_END = WS_CNT + 64 * 256
WS_SIZE = 1 << 25
assert WS_END <= WS_SIZE

def srd(a, s, ka, nbytes):
    a(f"s_load_dwordx2 {sr(s,2)}, s[0:1], {ka}")
    a(f"s_mov_b32 s{s+2}, {nbytes}")
    a(f"s_mov_b32 s{s+3}, 0x20000")

def lam_base(a, lre, lim, ldt):
    a(f"v_lshlrev_b32 v{lre}, 16, v{lre}")
    a(f"v_lshlrev_b32 v{lim}, 16, v{lim}")
    a(f"v_lshlrev_b32 v{ldt}, 16, v{ldt}")
    a(f"v_mul_f32 v{ldt}, {f32(LOG2E)}, v{ldt}")
    a(f"v_exp_f32 v{ldt}, v{ldt}")
    a(f"v_cvt_pk_bf16_f32 v{ldt}, v{ldt}, v{ldt}")
    a(f"v_and_b32 v{ldt}, 0xffff0000, v{ldt}")
    a(f"v_mul_f32 v{lre}, v{ldt}, v{lre}")
    a(f"v_mul_f32 v{lim}, v{ldt}, v{lim}")
    a(f"v_mul_f32 v{lre}, {f32(LOG2E)}, v{lre}")
    a(f"v_mul_f32 v{lim}, {f32(INV2PI)}, v{lim}")

def lam_pow(a, dre, dim, ea, ph, k, t):
    ks = k if isinstance(k, str) else f32(float(k))
    a(f"v_mul_f32 v{t}, {ks}, v{ea}")
    a(f"v_mul_f32 v{dim}, {ks}, v{ph}")
    a(f"v_exp_f32 v{t}, v{t}")
    a(f"v_fract_f32 v{dim}, v{dim}")
    a(f"v_cos_f32 v{dre}, v{dim}")
    a(f"v_sin_f32 v{dim}, v{dim}")
    a(f"v_mul_f32 v{dre}, v{t}, v{dre}")
    a(f"v_mul_f32 v{dim}, v{t}, v{dim}")

def kernel_footer(name, vgpr, sgpr, accum):
    return f""".section .rodata,"a"
.p2align 6
.amdhsa_kernel {name}
  .amdhsa_next_free_vgpr {vgpr}
  .amdhsa_next_free_sgpr {sgpr}
  .amdhsa_accum_offset {accum}
  .amdhsa_group_segment_fixed_size 0
  .amdhsa_kernarg_size 128
  .amdhsa_user_sgpr_count 2
  .amdhsa_user_sgpr_kernarg_segment_ptr 1
  .amdhsa_system_sgpr_workgroup_id_x 1
.end_amdhsa_kernel
.text
"""

PROF = False
WS_PROF = 28 << 20
assert WS_END <= WS_PROF
def set_prof(v):
    global PROF
    PROF = v
def stamp(a, i):
    if not PROF: return
    a(f"s_memtime s[{70+2*i}:{71+2*i}]")
    a("s_waitcnt lgkmcnt(0)")
def stamp_flush(a, n, kidx, s_ws, s_wave, vt=250):
    if not PROF: return
    a("s_mov_b64 exec, -1")
    a("s_memrealtime s[98:99]")
    a("s_waitcnt lgkmcnt(0)")
    a(f"v_mov_b32 v{vt}, 0")
    for i in range(n):
        a(f"v_writelane_b32 v{vt}, s{70+2*i}, {i}")
    a(f"v_writelane_b32 v{vt}, s96, 14")
    a(f"v_writelane_b32 v{vt}, s98, 15")
    a(f"s_lshl_b32 s98, s2, 4")
    a(f"s_add_u32 s98, s98, s{s_wave}")
    a(f"s_lshl_b32 s98, s98, 6")
    a(f"s_add_u32 s98, s98, {WS_PROF + (kidx << 20)}")
    a(f"v_mbcnt_lo_u32_b32 v{vt+1}, -1, 0")
    a(f"v_lshlrev_b32 v{vt+1}, 2, v{vt+1}")
    a("s_mov_b64 exec, 0xffff")
    a(f"buffer_store_dword v{vt}, v{vt+1}, s[{s_ws}:{s_ws+3}], s98 offen")
def stamp_start(a):
    if not PROF: return
    a("s_memrealtime s[96:97]")
    stamp(a, 0)

OPT = {}
def opt(k, d=None): return OPT.get(k, d)

def pk_step(a, dst, lam, h, u):
    a(f"v_pk_fma_f32 {vr(dst,2)}, {vr(lam,2)}, {vr(h,2)}, {vr(u,2)} op_sel:[0,0,0] op_sel_hi:[0,1,1]")
    a(f"v_pk_fma_f32 {vr(dst,2)}, {vr(lam,2)}, {vr(h,2)}, {vr(dst,2)} op_sel:[1,1,0] op_sel_hi:[1,0,1] neg_lo:[1,0,0]")
```

```python
from common import *
import common

SLOT = 40960
WOFF = 16384
NST = 9
sRB, sCT, sW = 3, 4, 5
S_X, S_W, S_W2, S_WS = 8, 12, 16, 20
sT0, sT1, sT2, sT3, sT4, sT5 = 24, 25, 26, 27, 28, 29
S_A, S_B, S_C = 32, 36, 40
sLW = 44
EXE = SLOT + 8192
EXZ = EXE - 7 * 768

def loader(a, typ):
    vX, vW = 8, 9
    a(f"s_sub_u32 s{sLW}, s{sW}, 4")
    a(f"s_and_b32 s{sT0}, s{sLW}, 1")
    a(f"s_lshr_b32 s{sT1}, s{sLW}, 1")
    if typ == "b":
        a(f"s_lshl_b32 s{sT2}, s{sT1}, 3")
        a(f"s_add_u32 s{sT2}, s{sT2}, {KA_BRE}")
        a(f"s_load_dwordx2 {sr(S_W,2)}, s[0:1], s{sT2}")
        a(f"s_mov_b32 s{S_W+2}, {D*D*2}")
        a(f"s_mov_b32 s{S_W+3}, 0x20000")
    a("v_lshrrev_b32 v3, 3, v1")
    a("v_and_b32 v4, 7, v1")
    a("v_lshrrev_b32 v2, 4, v1")
    a(f"s_lshl_b32 s{sT2}, s{sT0}, 2")
    a(f"v_xor_b32 v2, s{sT2}, v2")
    a("v_xor_b32 v2, v2, v4")
    a("v_lshlrev_b32 v2, 4, v2")
    if typ == "w":
        a(f"s_lshl_b32 s{sT2}, s{sT0}, 4")
        a(f"s_lshl_b32 s{sT3}, s{sT1}, 3")
        a(f"s_add_u32 s{sT2}, s{sT2}, s{sT3}")
        a(f"v_add_u32 v5, s{sT2}, v3")
    else:
        a(f"s_lshl_b32 s{sT2}, s{sT0}, 5")
        a(f"s_lshl_b32 s{sT3}, s{sT1}, 2")
        a(f"s_add_u32 s{sT2}, s{sT2}, s{sT3}")
        a("v_lshrrev_b32 v5, 5, v1")
        a("v_and_b32 v6, 3, v3")
        a("v_lshl_add_u32 v5, v5, 4, v6")
        a(f"v_add_u32 v5, s{sT2}, v5")
    a("v_mul_u32_u24 v5, 1152, v5")
    a(f"s_mul_i32 s{sT3}, s{sRB}, {128*1152}")
    a(f"v_add3_u32 v{vX}, v5, v2, s{sT3}")
    if typ == "b":
        a(f"s_sub_u32 s{sT3}, s{sCT}, 9")
        a(f"s_mul_i32 s{sT3}, s{sT3}, 96")
        a(f"s_lshl_b32 s{sT2}, s{sT0}, 3")
        a(f"s_add_u32 s{sT3}, s{sT3}, s{sT2}")
        a(f"s_mul_i32 s{sT3}, s{sT3}, 1152")
        a("v_mul_u32_u24 v5, 1152, v3")
        a(f"v_add3_u32 v{vW}, v5, v2, s{sT3}")
    else:
        a("v_bfe_u32 v2, v1, 4, 1")
        a(f"v_lshl_add_u32 v2, v2, 1, s{sT0}") if False else None
        a("v_lshlrev_b32 v2, 1, v2")
        a(f"s_lshl_b32 s{sT2}, s{sT0}, 2")
        a(f"v_or_b32 v2, s{sT2}, v2")
        a("v_xor_b32 v2, v2, v4")
        a("v_lshlrev_b32 v2, 4, v2")
        a("v_mul_u32_u24 v5, 3456, v3")
        a(f"s_mul_i32 s{sT2}, s{sLW}, {8*3456}")
        a(f"s_mul_i32 s{sT3}, s{sCT}, 384")
        a(f"s_add_u32 s{sT3}, s{sT3}, s{sT2}")
        a(f"v_add3_u32 v{vW}, v5, v2, s{sT3}")
    a(f"s_lshl_b32 s{sLW}, s{sLW}, 10")
    a("s_waitcnt lgkmcnt(0)")
    def issue(t):
        slot = (t % 4) * SLOT
        xs = [("x", i) for i in range(4)]; ws = [("w", i) for i in range(6)]
        for kind, i in [ws[0], xs[0], ws[2], xs[1], ws[4], xs[2], ws[1], xs[3], ws[3], ws[5]]:
            if kind == "x":
                rows = 32 * i if typ == "w" else 8 * (i & 1) + 64 * (i >> 1)
                a(f"s_add_u32 m0, s{sLW}, {slot + i*4096}")
                a(f"s_mov_b32 s{sT0}, {t*128 + rows*1152}")
                a(f"buffer_load_dwordx4 v{vX}, {sr(S_X,4)}, s{sT0} offen lds")
            else:
                a(f"s_add_u32 m0, s{sLW}, {slot + WOFF + i*4096}")
                if typ == "b": a(f"s_mov_b32 s{sT0}, {t*128 + i*16*1152}")
                else: a(f"s_mov_b32 s{sT0}, {t*64*3456 + (i&1)*32*3456 + (i>>1)*128}")
                a(f"buffer_load_dwordx4 v{vW}, {sr(S_W,4)}, s{sT0} offen lds")
    stamp(a, 1)
    issue(0); issue(1)
    stamp(a, 2)
    issued = 1
    for t in range(NST):
        a(f"s_waitcnt vmcnt({10*(issued - t)})")
        if typ == "b" and t == 8: a("s_waitcnt lgkmcnt(0)")
        stamp(a, 3 + t)
        a("s_barrier")
        if t + 2 < NST:
            issue(t + 2); issued = t + 2
        if typ == "b" and t == 7:
            for i in range(4): a(f"v_mov_b32 v{12+i}, 0")
            a(f"v_lshl_add_u32 v2, v1, 4, s{sLW}")
            a(f"ds_write_b128 v2, v[12:15] offset:{EXE - 8192}")
            a(f"ds_write_b128 v2, v[12:15] offset:{EXE - 4096}")
    stamp_flush(a, 12, 0, S_WS, sW)
    a("s_endpgm")

vXA = 2
vWA = 4
vEA = 8
vA = [12, 28]
vB = 44
vAC = 68
vL = 164
vPK = 182

def compute_main(a, typ):
    NQ = 2 * NST
    def rdA(q, rt): return [f"ds_read_b128 {vr(vA[q%2]+4*rt,4)}, v{vXA+q%2} offset:{rt*2048}"]
    def rdB(q, b):
        s = q % 2
        if typ == "w":
            return [f"ds_read_b64_tr_b16 {vr(vB+4*b+2*j2,2)}, v{vWA+(b&3)} offset:{(b>>2)*8192 + (32*s+4*j2)*128}" for j2 in range(2)]
        return [f"ds_read_b128 {vr(vB+4*b,4)}, v{vWA+s} offset:{b*2048}"]
    def advance(t):
        d = SLOT if t % 4 else -3 * SLOT
        regs = [vXA, vXA + 1] + [vWA + i for i in range(4 if typ == "w" else 2)]
        return [f"v_add_u32 v{r}, {d & 0xffffffff}, v{r}" for r in regs]
    issued = []
    def emit(tag, lines):
        for l in lines:
            a(l); issued.append(tag)
    last = [None]
    def wait(*tags):
        idx = max(len(issued) - 1 - issued[::-1].index(t) for t in tags)
        n = min(15, len(issued) - 1 - idx)
        if last[0] is None or idx > last[0]:
            a(f"s_waitcnt lgkmcnt({n})")
            last[0] = len(issued) - 1 - n
    stamp(a, 1)
    a("s_barrier")
    stamp(a, 2)
    emit(("B", 0, 0), rdB(0, 0))
    for rt in range(4): emit(("A", 0, rt), rdA(0, rt))
    for b in range(1, 6): emit(("B", 0, b), rdB(0, b))
    for q in range(NQ):
        more = q + 1 < NQ
        for b in range(6):
            for rt in range(4):
                wait(("A", q, rt), ("B", q, b))
                acc = vAC + 16 * b + 4 * rt
                a(f"v_mfma_f32_16x16x32_bf16 {vr(acc,4)}, {vr(vA[q%2]+4*rt,4)}, {vr(vB+4*b,4)}, {'0' if q == 0 else vr(acc,4)}")
                if more and b == 0 and rt == 0 and q % 2 == 1:
                    a("s_barrier")
                    for l in advance((q + 1) // 2): a(l)
                if more and rt == 3: emit(("B", q + 1, b), rdB(q + 1, b))
                if more and rt == 1 and 1 <= b <= 4: emit(("A", q + 1, b - 1), rdA(q + 1, b - 1))
    stamp(a, 3)

def fin(a):
    if common.PROF:
        stamp(a, 4)
        a("s_waitcnt vmcnt(0)")
        stamp(a, 5)
        stamp_flush(a, 6, 0, S_WS, sW)
    a("s_endpgm")

def frag_addr(a):
    a("v_and_b32 v12, 15, v1")
    a("v_lshrrev_b32 v13, 4, v1")
    a(f"s_lshr_b32 s{sMH}, s{sW}, 1")
    a(f"s_and_b32 s{sNH}, s{sW}, 1")
    a("v_lshrrev_b32 v14, 1, v12")
    a("v_xor_b32 v14, v14, v13")
    a("v_lshlrev_b32 v14, 4, v14")
    a("v_lshl_add_u32 v14, v12, 7, v14")
    a(f"s_lshl_b32 s{sT0}, s{sMH}, 13")
    a(f"v_add_u32 v{vXA}, s{sT0}, v14")
    a(f"v_xor_b32 v{vXA+1}, 64, v{vXA}")

sMH, sNH = 56, 57
def compute_w(a):
    ST = opt("k1st", "sc1")
    frag_addr(a)
    a("v_bfe_u32 v15, v1, 2, 2")
    a("v_lshl_add_u32 v16, v13, 3, v15")
    a("v_lshlrev_b32 v16, 7, v16")
    a("v_and_b32 v17, 3, v1")
    a("v_lshl_add_u32 v16, v17, 3, v16")
    a("v_lshrrev_b32 v15, 1, v15")
    a("v_and_b32 v17, 1, v13")
    a("v_lshl_add_u32 v15, v17, 1, v15")
    a(f"s_lshl_b32 s{sT0}, s{sNH}, 1")
    a(f"v_xor_b32 v15, s{sT0}, v15")
    a("v_lshl_add_u32 v16, v15, 5, v16")
    a(f"s_lshl_b32 s{sT0}, s{sNH}, 13")
    a(f"s_add_u32 s{sT1}, s{sT0}, {WOFF}")
    a(f"s_add_u32 s{sT2}, s{sT1}, s{sT0}")
    for bq in range(4):
        a(f"v_xor_b32 v17, {bq << 5}, v16")
        a(f"v_add_u32 v{vWA+bq}, s{sT1 if bq < 2 else sT2}, v17")
    sRS, sB0, sB1, sKind, sJ, sSc = 46, 48, 49, 50, 51, 54
    a(f"s_mul_i32 s{sKind}, s{sCT}, 11")
    a(f"s_lshr_b32 s{sKind}, s{sKind}, 5")
    a(f"s_mul_i32 s{sT1}, s{sKind}, 3")
    a(f"s_sub_u32 s{sJ}, s{sCT}, s{sT1}")
    a(f"s_cmp_eq_u32 s{sKind}, 0")
    a(f"s_cselect_b32 s{sSc}, {f32(QSCALE)}, 1.0")
    a(f"s_mov_b32 s{sSc+1}, s{sSc}")
    a(f"s_cmp_eq_u32 s{sKind}, 2")
    a(f"s_movk_i32 s{sT3}, {QK_RS}")
    a(f"s_cselect_b32 s{sRS}, {V_RS}, s{sT3}")
    a(f"s_mul_i32 s{sB0}, s{sKind}, {256*QK_RS}")
    a(f"s_lshl_b32 s{sT1}, s{sRB}, 4")
    a(f"s_lshl_b32 s{sT2}, s{sMH}, 3")
    a(f"s_add_u32 s{sT1}, s{sT1}, s{sT2}")
    a(f"s_mul_i32 s{sT1}, s{sT1}, s{sRS}")
    a(f"s_add_u32 s{sB0}, s{sB0}, s{sT1}")
    if WS_Q: a(f"s_add_u32 s{sB0}, s{sB0}, {WS_Q}")
    a(f"s_lshl_b32 s{sT2}, s{sRS}, 2")
    a(f"s_add_u32 s{sB1}, s{sB0}, s{sT2}")
    a(f"s_mul_i32 s{sT1}, s{sJ}, {192*16}")
    a(f"s_mul_i32 s{sT2}, s{sNH}, {96*16}")
    a(f"s_add_u32 s{sT1}, s{sT1}, s{sT2}")
    a(f"v_mul_u32_u24 v15, s{sRS}, v13")
    a("v_lshl_add_u32 v15, v12, 4, v15")
    a(f"v_add_u32 v{vEA}, s{sT1}, v15")
    a("s_waitcnt lgkmcnt(0)")
    compute_main(a, "w")
    for b in range(6):
        for j in range(8):
            r = vAC + 16 * b + 2 * j
            a(f"v_pk_mul_f32 {vr(r,2)}, {vr(r,2)}, {sr(sSc,2)}")
        for T in range(2):
            P = vPK + 8 * b + 4 * T
            for j in range(4):
                r = vAC + 16 * b + 8 * T + 2 * j
                a(f"v_cvt_pk_bf16_f32 v{P+j}, v{r}, v{r+1}")
            a(f"buffer_store_dwordx4 {vr(P,4)}, v{vEA}, {sr(S_WS,4)}, s{sB1 if T else sB0} offen offset:{b*256} {ST}")
    a(f"s_add_u32 s{sT0}, s{sCT}, s{sNH}")
    a(f"s_cmp_lg_u32 s{sT0}, 6")
    a("s_cbranch_scc1 k1_fin")
    a(f"s_cmp_lg_u32 s{sKind}, 2")
    a("s_cbranch_scc1 k1_fin")
    a("v_lshrrev_b32 v2, 3, v1")
    a(f"v_mul_u32_u24 v2, {V_RS}, v2")
    a("v_and_b32 v3, 7, v1")
    a("v_lshl_add_u32 v2, v3, 4, v2")
    a(f"v_add_u32 v2, {576*16}, v2")
    for i in range(4):
        a(f"v_mov_b32 v{4+i}, 0x3f803f80")
    a(f"buffer_store_dwordx4 v[4:7], v2, {sr(S_WS,4)}, s{sB0} offen {ST}")
    a("s_branch k1_fin")

def compute_b(a):
    ST = opt("k1st", "sc1")
    frag_addr(a)
    sC0, sHB = 46, 47
    a(f"s_sub_u32 s{sT0}, s{sCT}, 9")
    a(f"s_mul_i32 s{sC0}, s{sT0}, 6")
    a(f"s_mul_i32 s{sT1}, s{sNH}, 3")
    a(f"s_add_u32 s{sC0}, s{sC0}, s{sT1}")
    a(f"s_lshl_b32 s{sT0}, s{sC0}, 5")
    a(f"v_lshl_add_u32 v15, v12, 1, s{sT0}")
    a("s_waitcnt lgkmcnt(0)")
    for g in range(3):
        a(f"buffer_load_ushort v{vPK+3*g}, v15, {sr(S_A,4)}, 0 offen offset:{32*g}")
        a(f"buffer_load_ushort v{vPK+3*g+1}, v15, {sr(S_B,4)}, 0 offen offset:{32*g}")
        a(f"buffer_load_ushort v{vPK+3*g+2}, v15, {sr(S_C,4)}, 0 offen offset:{32*g}")
    a(f"s_mul_i32 s{sT0}, s{sNH}, {96*128}")
    a(f"s_add_u32 s{sT0}, s{sT0}, {WOFF}")
    a(f"v_add_u32 v{vWA}, s{sT0}, v14")
    a(f"v_xor_b32 v{vWA+1}, 64, v{vWA}")
    a(f"s_lshl_b32 s{sHB}, s{sRB}, 1")
    a(f"s_add_u32 s{sHB}, s{sHB}, s{sMH}")
    vN8, vEX, vPA, vL16 = vEA, vEA + 1, vEA + 2, vEA + 3
    a(f"v_lshlrev_b32 v{vN8}, 3, v12")
    a(f"s_mul_i32 s{sT1}, s{sMH}, {4*768}")
    a(f"s_mul_i32 s{sT2}, s{sNH}, 384")
    a(f"s_add_u32 s{sT1}, s{sT1}, s{sT2}")
    a(f"v_mul_u32_u24 v14, 768, v13")
    a(f"v_add3_u32 v{vEX}, v14, v{vN8}, s{sT1}")
    a(f"v_mul_u32_u24 v14, {576*8}, v13")
    a(f"v_add_u32 v{vPA}, v14, v{vN8}")
    a(f"v_lshlrev_b32 v{vL16}, 4, v1")
    a("s_waitcnt vmcnt(0)")
    for g in range(3):
        lre, lim, ldt = vPK + 3 * g, vPK + 3 * g + 1, vPK + 3 * g + 2
        lam_base(a, lre, lim, ldt)
        B = vL + 6 * g
        lam_pow(a, B, B + 1, lre, lim, 1.0, ldt)
        lam_pow(a, B + 2, B + 3, lre, lim, 2.0, ldt)
        lam_pow(a, B + 4, B + 5, lre, lim, 16.0, ldt)
    compute_main(a, "b")
    a(f"s_mul_i32 s{sT0}, s{sHB}, 36")
    a(f"s_add_u32 s{sT0}, s{sT0}, s{sC0}")
    a(f"s_lshl_b32 s{sT0}, s{sT0}, 12")
    a(f"s_add_u32 s{sT0}, s{sT0}, {WS_U}")
    sU = [sT0, sT2, sT3]
    a(f"s_add_u32 s{sT2}, s{sT0}, 4096")
    a(f"s_add_u32 s{sT3}, s{sT0}, 8192")
    def packstore(g, q):
        R, I, P = vAC + 32 * g, vAC + 32 * g + 16, vPK + 16 * g
        for r in range(4 * q, 4 * q + 4):
            a(f"v_cvt_pk_bf16_f32 v{P+r}, v{R+r}, v{I+r}")
        a(f"buffer_store_dwordx4 {vr(P+4*q,4)}, v{vL16}, {sr(S_WS,4)}, s{sU[g]} offen offset:{q*1024} {ST}")
    def hstep(j):
        for half in range(2):
            for g in range(3):
                R, I, B = vAC + 32 * g + 2 * j, vAC + 32 * g + 16 + 2 * j, vL + 6 * g + 2
                if half == 0:
                    a(f"v_pk_fma_f32 {vr(R,2)}, {vr(B,2)}, {vr(R-2,2)}, {vr(R,2)} op_sel:[0,0,0] op_sel_hi:[0,1,1]")
                    a(f"v_pk_fma_f32 {vr(I,2)}, {vr(B,2)}, {vr(I-2,2)}, {vr(I,2)} op_sel:[0,0,0] op_sel_hi:[0,1,1]")
                else:
                    a(f"v_pk_fma_f32 {vr(R,2)}, {vr(B,2)}, {vr(I-2,2)}, {vr(R,2)} op_sel:[1,0,0] op_sel_hi:[1,1,1] neg_lo:[1,0,0] neg_hi:[1,0,0]")
                    a(f"v_pk_fma_f32 {vr(I,2)}, {vr(B,2)}, {vr(R-2,2)}, {vr(I,2)} op_sel:[1,0,0] op_sel_hi:[1,1,1]")
    for q in range(4):
        for g in range(3): packstore(g, q)
        for j in (2 * q, 2 * q + 1):
            if j: hstep(j)
    EO = 12
    for g in range(3):
        R, I, B = vAC + 32 * g + 14, vAC + 32 * g + 30, vL + 6 * g
        a(f"v_fma_f32 v{EO+2*g}, v{B}, v{R}, v{R+1}")
        a(f"v_fma_f32 v{EO+2*g+1}, v{B}, v{I}, v{I+1}")
    for g in range(3):
        R, I, B = vAC + 32 * g + 14, vAC + 32 * g + 30, vL + 6 * g
        a(f"v_fma_f32 v{EO+2*g}, -v{B+1}, v{I}, v{EO+2*g}")
        a(f"v_fmac_f32 v{EO+2*g+1}, v{B+1}, v{R}")
        a(f"ds_write_b64 v{vEX}, {vr(EO+2*g,2)} offset:{EXE + g*128}")
    a(f"s_mul_i32 s{sT0}, s{sHB}, {4*576*8}")
    a(f"s_lshl_b32 s{sT1}, s{sC0}, 7")
    a(f"s_add_u32 s{sT0}, s{sT0}, s{sT1}")
    a(f"s_add_u32 s{sT0}, s{sT0}, {WS_P}")
    a("s_waitcnt lgkmcnt(0)")
    a("s_barrier")
    ER = 20
    for s in range(7):
        for g in range(3):
            a(f"ds_read_b64 {vr(ER+6*s+2*g,2)}, v{vEX} offset:{EXZ + s*768 + g*128}")
    for s in range(1, 7):
        a(f"s_waitcnt lgkmcnt({min(15, 3*(6-s))})")
        for g in range(3):
            pk_step(a, ER + 6 * s + 2 * g, vL + 6 * g + 4, ER + 6 * (s - 1) + 2 * g, ER + 6 * s + 2 * g)
    PR = ER + 36
    for g in range(3):
        a(f"buffer_store_dwordx2 {vr(PR+2*g,2)}, v{vPA}, {sr(S_WS,4)}, s{sT0} offen offset:{g*128} {ST}")
    a(f"s_cmp_lg_u32 s{sMH}, 1")
    a("s_cbranch_scc1 k1_fin")
    for g in range(3):
        pk_step(a, EO + 2 * g, vL + 6 * g + 4, PR + 2 * g, EO + 2 * g)
    a(f"s_mul_i32 s{sT0}, s{sRB}, {576*8}")
    a(f"s_add_u32 s{sT0}, s{sT0}, s{sT1}")
    a(f"s_add_u32 s{sT0}, s{sT0}, {WS_E}")
    a("s_mov_b32 exec_lo, 0")
    a("s_mov_b32 exec_hi, 0xffff0000")
    for g in range(3):
        a(f"buffer_store_dwordx2 {vr(EO+2*g,2)}, v{vN8}, {sr(S_WS,4)}, s{sT0} offen offset:{g*128} {ST}")
    a("s_branch k1_fin")

def aux(a):
    S_CRE, S_CIM, S_WO = 48, 52, 56
    sJ, sK, sCL = 64, 65, 66
    srd(a, S_CRE, KA_CRE, 576 * 576 * 2)
    srd(a, S_CIM, KA_CIM, 576 * 576 * 2)
    srd(a, S_WO, KA_WO, 576 * 576 * 2)
    COEF = 576 * 128
    CST = COEF + 5120
    a("v_lshlrev_b32 v2, 1, v0")
    a("v_lshrrev_b32 v5, 3, v1")
    a("v_mul_u32_u24 v3, 1152, v5")
    a("v_and_b32 v6, 7, v1")
    a("v_lshrrev_b32 v7, 4, v1")
    a("v_xor_b32 v7, v7, v6")
    a("v_lshl_add_u32 v4, v7, 4, v3")
    a("v_xor_b32 v8, 64, v4")
    a("v_lshl_add_u32 v3, v6, 4, v3")
    a(f"s_lshl_b32 s{sCL}, s{sW}, 13")
    a(f"s_add_u32 s{sCL}, s{sCL}, {CST}")
    a(f"s_lshl_b32 s{sJ}, s{sRB}, 3")
    a(f"s_add_u32 s{sJ}, s{sJ}, s{sW}")
    a("s_waitcnt lgkmcnt(0)")
    for rnd in range(2):
        for i, d in enumerate((S_A, S_B, S_C)):
            a(f"buffer_load_ushort v{10+3*rnd+i}, v2, {sr(d,4)}, 0 offen offset:{1024*rnd}")
    def cjob_load():
        a(f"s_mul_i32 s{sT0}, s{sJ}, 7282")
        a(f"s_lshr_b32 s{sT0}, s{sT0}, 16")
        a(f"s_mul_i32 s{sT1}, s{sT0}, 9")
        a(f"s_sub_u32 s{sT1}, s{sJ}, s{sT1}")
        a(f"s_mul_i32 s{sT2}, s{sT0}, {32*1152}")
        a(f"s_lshl_b32 s{sT3}, s{sT1}, 7")
        a(f"s_add_u32 s{sT2}, s{sT2}, s{sT3}")
        for i in range(4):
            for mi, d in enumerate((S_CRE, S_CIM)):
                a(f"s_add_u32 m0, s{sCL}, {mi*4096 + i*1024}")
                a(f"buffer_load_dwordx4 v{8 if i & 1 else 4}, {sr(d,4)}, s{sT2} offen lds")
            if i < 3: a(f"s_add_u32 s{sT2}, s{sT2}, {8*1152}")
    cjob_load()
    a(f"s_cmp_ge_u32 s{sRB}, 9")
    a("s_cbranch_scc1 k1_aux_nowo")
    a(f"s_lshl_b32 s{sT1}, s{sRB}, 7")
    a(f"s_mul_i32 s{sT2}, s{sW}, {8*1152}")
    a(f"s_add_u32 s{sT1}, s{sT1}, s{sT2}")
    a(f"s_lshl_b32 s{sT2}, s{sW}, 10")
    for i in range(9):
        a(f"s_add_u32 m0, s{sT2}, {i*8192}")
        a(f"buffer_load_dwordx4 v3, {sr(S_WO,4)}, s{sT1} offen lds")
        if i < 8: a(f"s_add_u32 s{sT1}, s{sT1}, {64*1152}")
    a("s_waitcnt vmcnt(17)")
    a("s_branch k1_aux_par")
    a.label("k1_aux_nowo")
    a(f"s_cmp_lg_u32 s{sRB}, 15")
    a("s_cbranch_scc1 k1_aux_nocnt")
    a("v_mov_b32 v20, 0")
    a("v_lshlrev_b32 v21, 5, v0")
    a(f"s_mov_b32 s{sT0}, {WS_CNT}")
    a(f"buffer_store_dword v20, v21, {sr(S_WS,4)}, s{sT0} offen")
    a.label("k1_aux_nocnt")
    a("s_waitcnt vmcnt(0)")
    a.label("k1_aux_par")
    stamp(a, 1)
    a(f"s_lshl_b32 s{sT0}, s{sRB}, 4")
    a(f"s_cmp_eq_u32 s{sRB}, 8")
    a(f"s_cselect_b32 s{sT0}, 1, s{sT0}")
    a(f"s_cmp_eq_u32 s{sRB}, 9")
    a(f"s_cselect_b32 s{sT0}, 0x80, s{sT0}")
    a(f"v_cvt_f32_u32 v20, s{sT0}")
    a(f"v_readfirstlane_b32 s{sK}, v20")
    a(f"s_mul_i32 s{sT4}, s{sRB}, {576*8}")
    a(f"s_add_u32 s{sT4}, s{sT4}, {WS_T}")
    a("v_lshlrev_b32 v9, 3, v0")
    for rnd in range(2):
        lre, lim, ldt = 10 + 3 * rnd, 11 + 3 * rnd, 12 + 3 * rnd
        if rnd == 1:
            a(f"s_cmp_lg_u32 s{sW}, 0")
            a("s_cbranch_scc1 k1_aux_coefdone")
        a(f"v_lshlrev_b32 v16, 16, v{lre}")
        a(f"v_lshlrev_b32 v17, 16, v{lim}")
        lam_base(a, lre, lim, ldt)
        lam_pow(a, 18, 19, lre, lim, 1.0, ldt)
        a("v_add_f32 v18, -1.0, v18")
        a("v_mul_f32 v2, v16, v16")
        a("v_fmac_f32 v2, v17, v17")
        a("v_rcp_f32 v2, v2")
        a("v_mul_f32 v52, v18, v16")
        a("v_fmac_f32 v52, v19, v17")
        a("v_mul_f32 v53, v19, v16")
        a("v_fma_f32 v53, -v18, v17, v53")
        a("v_add_f32 v2, v2, v2")
        a("v_mul_f32 v52, v52, v2")
        a("v_mul_f32 v53, v53, v2")
        a(f"v_add_u32 v54, {COEF + 4096*rnd}, v9")
        a("ds_write_b64 v54, v[52:53]")
        a(f"s_cmp_ge_u32 s{sRB}, 10")
        a(f"s_cbranch_scc1 k1_aux_notab{rnd}")
        lam_pow(a, 56, 57, lre, lim, f"s{sK}", ldt)
        if rnd == 1: a(f"s_add_u32 s{sT4}, s{sT4}, 4096")
        a(f"buffer_store_dwordx2 v[56:57], v9, {sr(S_WS,4)}, s{sT4} offen")
        a.label(f"k1_aux_notab{rnd}")
    a.label("k1_aux_coefdone")
    a("v_and_b32 v5, 31, v1")
    a("v_bfe_u32 v6, v1, 1, 3")
    a("v_lshrrev_b32 v7, 5, v1")
    a("v_lshlrev_b32 v9, 2, v7")
    a("v_xor_b32 v6, v6, v9")
    a(f"v_lshl_add_u32 v5, v5, 7, s{sCL}")
    for q in range(4):
        a(f"v_xor_b32 v9, {q}, v6")
        a(f"v_lshl_add_u32 v{12+q}, v9, 4, v5")
    a("s_waitcnt vmcnt(0) lgkmcnt(0)")
    stamp(a, 2)
    a("s_barrier")
    stamp(a, 3)
    CR, CI, CF, XO, YO, T = 20, 36, 60, 128, 144, 160
    a.label("k1_aux_cjob")
    a(f"s_mul_i32 s{sT0}, s{sJ}, 7282")
    a(f"s_lshr_b32 s{sT0}, s{sT0}, 16")
    a(f"s_mul_i32 s{sT1}, s{sT0}, 9")
    a(f"s_sub_u32 s{sT1}, s{sJ}, s{sT1}")
    a(f"s_lshl_b32 s{sT2}, s{sT1}, 9")
    a(f"s_add_u32 s{sT2}, s{sT2}, {COEF}")
    a(f"v_lshl_add_u32 v9, v7, 8, s{sT2}")
    a("s_waitcnt vmcnt(0)")
    for q in range(4):
        a(f"ds_read_b128 {vr(CR+4*q,4)}, v{12+q}")
        a(f"ds_read_b128 {vr(CI+4*q,4)}, v{12+q} offset:4096")
        for i in range(4 * q, 4 * q + 4):
            a(f"ds_read_b128 {vr(CF+4*i,4)}, v9 offset:{16*i}")
    for q in range(4):
        a(f"s_waitcnt lgkmcnt({min(15, 6*(3-q))})")
        for eo in range(2):
            for dw in range(2):
                src = 2 * eo + dw
                e0 = 8 * q + 2 * src
                a(f"v_lshlrev_b32 v{T}, 16, v{CR+4*q+src}")
                a(f"v_and_b32 v{T+1}, 0xffff0000, v{CR+4*q+src}")
                a(f"v_lshlrev_b32 v{T+2}, 16, v{CI+4*q+src}")
                a(f"v_and_b32 v{T+3}, 0xffff0000, v{CI+4*q+src}")
                for e in range(2):
                    cr, ci = CF + 2 * (e0 + e), CF + 2 * (e0 + e) + 1
                    a(f"v_mul_f32 v{T+4+e}, v{cr}, v{T+e}")
                    a(f"v_mul_f32 v{T+6+e}, v{ci}, v{T+e}")
                    a(f"v_fma_f32 v{T+4+e}, -v{ci}, v{T+2+e}, v{T+4+e}")
                    a(f"v_fma_f32 v{T+6+e}, -v{cr}, v{T+2+e}, -v{T+6+e}")
                base = YO if eo else XO
                m, pos = q >> 1, 2 * (q & 1) + dw
                a(f"v_cvt_pk_bf16_f32 v{base+0*8+4*m+pos}, v{T+4}, v{T+5}")
                a(f"v_cvt_pk_bf16_f32 v{base+1*8+4*m+pos}, v{T+6}, v{T+7}")
    a(f"s_mul_i32 s{sT2}, s{sT0}, 72")
    a(f"s_lshl_b32 s{sT3}, s{sT1}, 3")
    a(f"s_add_u32 s{sT2}, s{sT2}, s{sT3}")
    a(f"s_lshl_b32 s{sT2}, s{sT2}, 10")
    a(f"s_add_u32 s{sT4}, s{sT2}, {WS_CF}")
    a(f"s_add_u32 s{sT5}, s{sT4}, 4096")
    a(f"s_mov_b32 s{sK}, 0")
    a(f"s_cmp_lt_u32 s{sRB}, 9")
    a("s_cbranch_scc1 k1_aux_st")
    a(f"s_cmp_ge_u32 s{sJ}, 128")
    a("s_cbranch_scc1 k1_aux_st")
    a(f"s_add_u32 s{sJ}, s{sJ}, {128 - 72}")
    a(f"s_cmp_ge_u32 s{sJ}, 162")
    a("s_cbranch_scc1 k1_aux_st")
    a(f"s_mov_b32 s{sK}, 1")
    cjob_load()
    a.label("k1_aux_st")
    for i in range(16):
        a(f"v_permlane32_swap_b32 v{XO+i}, v{YO+i}")
    a("v_lshlrev_b32 v6, 4, v1")
    for i in range(4):
        off = 1024 * (2 * (i & 1) + (i >> 1))
        a(f"buffer_store_dwordx4 {vr(XO+4*i,4)}, v6, {sr(S_WS,4)}, s{sT4} offen offset:{off}")
        a(f"buffer_store_dwordx4 {vr(YO+4*i,4)}, v6, {sr(S_WS,4)}, s{sT5} offen offset:{off}")
    a(f"s_cmp_eq_u32 s{sK}, 1")
    a("s_cbranch_scc1 k1_aux_cjob")
    a(f"s_cmp_ge_u32 s{sRB}, 9")
    a("s_cbranch_scc1 k1_fin")
    a("v_bfe_u32 v2, v1, 2, 2")
    a("v_lshrrev_b32 v3, 5, v1")
    a("v_bfe_u32 v4, v1, 4, 1")
    a("v_lshlrev_b32 v4, 5, v4")
    a("v_and_b32 v5, 3, v1")
    a("v_lshl_add_u32 v4, v5, 3, v4")
    a("v_lshl_add_u32 v5, v3, 2, v2")
    a("v_lshl_add_u32 v5, v5, 7, v4")
    a(f"s_mul_i32 s{sT0}, s{sW}, {4*18*128}")
    a(f"v_add_u32 v5, s{sT0}, v5")
    a("v_lshrrev_b32 v8, 1, v2")
    a("v_lshl_add_u32 v8, v3, 2, v8")
    a("v_mul_u32_u24 v8, 18, v8")
    a("v_and_b32 v7, 1, v2")
    a("v_add3_u32 v8, v8, v7, 16")
    a("v_lshl_add_u32 v8, v8, 7, v4")
    a(f"s_and_b32 s{sT1}, s{sW}, 3")
    a(f"s_lshr_b32 s{sT2}, s{sW}, 2")
    a(f"s_mul_i32 s{sT0}, s{sT1}, {8*18*128}")
    a(f"s_lshl_b32 s{sT3}, s{sT2}, 6")
    a(f"s_add_u32 s{sT0}, s{sT0}, s{sT3}")
    a(f"v_add_u32 v8, s{sT0}, v8")
    FR = 20
    for i in range(8):
        hd, ntl = i & 3, i >> 2
        off = hd * 18 * 128 + ntl * 64
        a(f"ds_read_b64_tr_b16 {vr(FR+4*i,2)}, v5 offset:{off}")
        a(f"ds_read_b64_tr_b16 {vr(FR+4*i+2,2)}, v5 offset:{off + 8*128}")
    a(f"ds_read_b64_tr_b16 {vr(FR+32,2)}, v8")
    a(f"ds_read_b64_tr_b16 {vr(FR+34,2)}, v8 offset:{36*128}")
    a(f"s_mul_i32 s{sT0}, s{sRB}, {2*36*1024}")
    a(f"s_add_u32 s{sT0}, s{sT0}, {WS_WOF}")
    a(f"s_lshl_b32 s{sT3}, s{sW}, 12")
    a(f"s_add_u32 s{sT3}, s{sT3}, s{sT0}")
    a(f"s_add_u32 s{sT4}, s{sT3}, {36*1024}")
    a(f"s_mul_i32 s{sT2}, s{sT2}, {36*1024}")
    a(f"s_add_u32 s{sT0}, s{sT0}, s{sT2}")
    a(f"s_lshl_b32 s{sT1}, s{sT1}, 10")
    a(f"s_add_u32 s{sT0}, s{sT0}, s{sT1}")
    a(f"s_add_u32 s{sT0}, s{sT0}, {32*1024}")
    a("s_waitcnt lgkmcnt(0)")
    for i in range(8):
        a(f"buffer_store_dwordx4 {vr(FR+4*i,4)}, v6, {sr(S_WS,4)}, s{sT3 if i < 4 else sT4} offen offset:{1024*(i&3)}")
    a(f"buffer_store_dwordx4 {vr(FR+32,4)}, v6, {sr(S_WS,4)}, s{sT0} offen")

def gen_k1():
    a = Asm()
    a("s_cmp_ge_u32 s2, 256")
    a("s_cbranch_scc1 k1_end")
    stamp_start(a)
    srd(a, S_X, KA_X, S * D * 2)
    a("v_lshrrev_b32 v2, 6, v0")
    a("v_and_b32 v1, 63, v0")
    a(f"v_readfirstlane_b32 s{sW}, v2")
    a(f"s_and_b32 s{sT0}, s2, 3")
    a(f"s_bfe_u32 s{sT1}, s2, 0x20003")
    a(f"s_lshl_b32 s{sRB}, s{sT0}, 2")
    a(f"s_add_u32 s{sRB}, s{sRB}, s{sT1}")
    a(f"s_bfe_u32 s{sT0}, s2, 0x10002")
    a(f"s_lshr_b32 s{sT1}, s2, 5")
    a(f"s_lshl_b32 s{sCT}, s{sT0}, 3")
    a(f"s_add_u32 s{sCT}, s{sCT}, s{sT1}")
    srd(a, S_WS, KA_WS, WS_SIZE)
    a(f"s_cmp_ge_u32 s{sCT}, 9")
    a("s_cbranch_scc1 k1_b")
    srd(a, S_W, KA_WQKV, D * 3 * D * 2)
    a(f"s_cmp_lt_u32 s{sW}, 4")
    a("s_cbranch_scc1 k1_w_cp")
    loader(a, "w")
    a.label("k1_b")
    srd(a, S_A, KA_LRE, D * 2)
    srd(a, S_B, KA_LIM, D * 2)
    srd(a, S_C, KA_LOGDT, D * 2)
    a(f"s_cmp_eq_u32 s{sCT}, 15")
    a("s_cbranch_scc1 k1_aux")
    a(f"s_cmp_lt_u32 s{sW}, 4")
    a("s_cbranch_scc1 k1_b_cp")
    loader(a, "b")
    a.label("k1_w_cp")
    compute_w(a)
    a.label("k1_b_cp")
    compute_b(a)
    a.label("k1_aux")
    aux(a)
    a.label("k1_fin")
    fin(a)
    a.label("k1_end")
    a("s_endpgm")
    return a
```

```python
from common import *
import common

S_WS, S_X, S_DS, S_GW = 8, 24, 28, 32
sHead, sQB, sW, sCG, sTT, sQ4, sB, sHB = 3, 4, 5, 6, 12, 13, 14, 15
sT0, sT1, sT2, sT3, sT4 = 16, 17, 18, 19, 20
sIt, sPass = 21, 22
K_TS, V_TS = 4 * 288, 4 * 304
LV = 64 * K_TS
LQ = LV + 64 * V_TS
LCNT = LQ + 9 * 1024
K2_LDS = LCNT + 64
U = 8
vLane16, vKA, vVA = 2, 4, 5
vQ, vQr = 8, 12
vK = [14, 20]
vV = [28, 36]
vP = 44
vS = [52, 68]
vO = 84
vNM = 100
sU, sP_, sLam, sL128, sL16, sE, sH, sBd, sA, sD = 8, 24, 26, 28, 30, 32, 64, 96, 104, 32

def diag(a, dst, val, shift, t0, t1):
    a(f"v_and_b32 v{t0}, 1, v1")
    a(f"v_cmp_eq_u32 vcc, 1, v{t0}")
    a(f"v_mov_b32 v{t0}, 0xffff")
    a(f"v_mov_b32 v{t1}, 0xffff0000")
    a(f"v_cndmask_b32 v{t0}, v{t0}, v{t1}, vcc")
    a(f"v_and_b32 v{val}, v{val}, v{t0}")
    a(f"v_and_b32 v{t0}, 31, v1")
    a(f"v_lshrrev_b32 v{t1}, 5, v1")
    a(f"v_lshlrev_b32 v{t1}, {shift}, v{t1}")
    a(f"v_sub_u32 v{t0}, v{t0}, v{t1}")
    a(f"v_lshrrev_b32 v{t0}, 1, v{t0}")
    for i in range(8):
        a(f"v_cmp_eq_u32 vcc, {i if shift == 4 else (i & 3) + 8 * (i >> 2)}, v{t0}")
        a(f"v_cndmask_b32 v{dst+i}, 0, v{val}, vcc")

def scan_loads(a, tag):
    a(f"s_lshr_b32 s{sB}, s{sHB}, 1")
    a(f"s_mul_i32 s{sT0}, s{sHB}, 36")
    a(f"s_add_u32 s{sT0}, s{sT0}, s{sCG}")
    a(f"s_lshl_b32 s{sT0}, s{sT0}, 12")
    a(f"s_add_u32 s{sT0}, s{sT0}, {WS_U}")
    a("v_lshrrev_b32 v62, 4, v1")
    a(f"v_mul_u32_u24 v62, {576*8}, v62")
    a("v_add_u32 v62, v62, v3")
    a(f"s_lshl_b32 s{sT1}, s{sCG}, 7")
    a(f"s_add_u32 s{sT2}, s{sT1}, {WS_T + 9*576*8}")
    a(f"s_add_u32 s{sT3}, s{sT1}, {WS_E}")
    a(f"buffer_load_dwordx2 {vr(sL128,2)}, v3, {sr(S_WS,4)}, s{sT2} offen")
    for i in range(15):
        a(f"s_cmp_le_u32 s{sB}, {i}")
        a(f"s_cbranch_scc1 k2_eld_done{tag}")
        a(f"buffer_load_dwordx2 {vr(sE+2*i,2)}, v3, {sr(S_WS,4)}, s{sT3} offen")
        if i < 14: a(f"s_add_u32 s{sT3}, s{sT3}, {576*8}")
    a.label(f"k2_eld_done{tag}")
    a(f"s_mul_i32 s{sT2}, s{sHB}, {4*576*8}")
    a(f"s_add_u32 s{sT2}, s{sT2}, s{sT1}")
    a(f"s_add_u32 s{sT2}, s{sT2}, {WS_P}")
    a(f"buffer_load_dwordx2 {vr(sP_,2)}, v62, {sr(S_WS,4)}, s{sT2} offen")
    a(f"s_and_b32 s{sT2}, s{sHB}, 1")
    a(f"s_mul_i32 s{sT2}, s{sT2}, {4*576*8}")
    a(f"s_add_u32 s{sT2}, s{sT2}, s{sT1}")
    a(f"s_add_u32 s{sT2}, s{sT2}, {WS_T}")
    a(f"buffer_load_dwordx2 {vr(sL16,2)}, v62, {sr(S_WS,4)}, s{sT2} offen")
    a(f"s_add_u32 s{sT2}, s{sT1}, {WS_T + 8*576*8}")
    a(f"buffer_load_dwordx2 {vr(sLam,2)}, v3, {sr(S_WS,4)}, s{sT2} offen")
    for q in range(4):
        a(f"buffer_load_dwordx4 {vr(sU+4*q,4)}, v{vLane16}, {sr(S_WS,4)}, s{sT0} offen offset:{1024*q}")

def scan_compute(a):
    a("v_mov_b32 v6, 0x3f803f80")
    diag(a, sBd, 6, 4, 7, 120)
    a(f"s_mul_i32 s{sT0}, s{sHB}, 72")
    a(f"s_add_u32 s{sT0}, s{sT0}, s{sCG}")
    a(f"s_lshl_b32 s{sT0}, s{sT0}, 11")
    a(f"s_add_u32 s{sT0}, s{sT0}, {WS_HF}")
    a("v_bfe_u32 v6, v1, 4, 1")
    a(f"v_mul_u32_u24 v6, {72*1024 - 256}, v6")
    a(f"v_add_u32 v6, v6, v{vLane16}")
    C = 120
    a(f"v_mov_b32 v{C}, 0")
    a(f"v_mov_b32 v{C+1}, 0")
    a("s_waitcnt vmcnt(7)")
    for i in range(15):
        a(f"s_cmp_le_u32 s{sB}, {i}")
        a("s_cbranch_scc1 k2_horner_done")
        pk_step(a, sE + 2 * i, sL128, C, sE + 2 * i)
        a(f"v_pk_mov_b32 {vr(C,2)}, {vr(sE+2*i,2)}, {vr(sE+2*i,2)} op_sel:[0,1]")
    a.label("k2_horner_done")
    a("s_waitcnt vmcnt(4)")
    pk_step(a, sP_, sL16, C, sP_)
    prev = sP_
    for r in range(16):
        if r % 4 == 0:
            a(f"s_waitcnt vmcnt({3 - r//4})")
            for rr in range(r, r + 4):
                a(f"v_lshlrev_b32 v{sH+2*rr}, 16, v{sU+rr}")
                a(f"v_and_b32 v{sH+2*rr+1}, 0xffff0000, v{sU+rr}")
        pk_step(a, sH + 2 * r, sLam, prev, sH + 2 * r)
        prev = sH + 2 * r
        if r & 1:
            a(f"v_cvt_pk_bf16_f32 v{sA+r//2}, v{sH+2*r-2}, v{sH+2*r}")
            a(f"v_cvt_pk_bf16_f32 v{sA+8+r//2}, v{sH+2*r-1}, v{sH+2*r+1}")
        if r == 8:
            for part in range(2):
                a(f"v_mfma_f32_32x32x16_bf16 {vr(sD+16*part,16)}, {vr(sA+8*part,4)}, {vr(sBd,4)}, 0")
    for part in range(2):
        a(f"v_mfma_f32_32x32x16_bf16 {vr(sD+16*part,16)}, {vr(sA+8*part+4,4)}, {vr(sBd+4,4)}, {vr(sD+16*part,16)}")
    for i in range(4):
        for j in range(4):
            a(f"v_cvt_pk_bf16_f32 v{sH+4*i+j}, v{sD+8*i+2*j}, v{sD+8*i+2*j+1}")
        a(f"buffer_store_dwordx4 {vr(sH+4*i,4)}, v6, {sr(S_WS,4)}, s{sT0} offen offset:{1024*(i>>1) + 256*(i&1)} sc1")

def kreads(a, buf, areg, off):
    a(f"ds_read_b64_tr_b16 {vr(buf,2)}, v{areg} offset:{off}")
    a(f"ds_read_b64_tr_b16 {vr(buf+2,2)}, v{areg} offset:{off+64}")
    a(f"ds_read_b64_tr_b16 {vr(buf+4,2)}, v{areg} offset:{off+256}")

def vreads(a, buf, off):
    a(f"ds_read_b128 {vr(buf,4)}, v{vVA} offset:{off}")
    a(f"ds_read_b128 {vr(buf+4,4)}, v{vVA} offset:{off+608}")

def addr_init(a):
    a("v_bfe_u32 v6, v1, 4, 1")
    a("v_and_b32 v7, 1, v1")
    a("v_lshl_add_u32 v6, v6, 1, v7")
    a("v_mul_u32_u24 v6, 288, v6")
    a("v_lshrrev_b32 v7, 5, v1")
    a("v_lshl_add_u32 v6, v7, 7, v6")
    a(f"v_mul_u32_u24 v{vVA}, 304, v7")
    a("v_bfe_u32 v7, v1, 2, 2")
    a("v_lshl_add_u32 v6, v7, 4, v6")
    a("v_bfe_u32 v7, v1, 1, 1")
    a(f"v_lshl_add_u32 v{vKA}, v7, 3, v6")
    a("v_and_b32 v7, 31, v1")
    a(f"v_lshl_add_u32 v{vVA}, v7, 4, v{vVA}")
    a(f"v_add_u32 v{vVA}, {LV}, v{vVA}")

def helper(a):
    sHW, sNT, sNJ, sA_, sB_ = 36, 37, 38, 39, 40
    a(f"s_sub_u32 s{sHW}, s{sW}, 8")
    a("v_mul_u32_u24 v4, 3641, v1")
    a("v_lshrrev_b32 v4, 16, v4")
    a(f"v_mul_u32_u24 v4, {QK_RS - 288}, v4")
    a(f"s_mul_i32 s{sT0}, s{sHead}, 288")
    a(f"v_add3_u32 v4, v4, v{vLane16}, s{sT0}")
    a("v_mul_u32_u24 v5, 3450, v1")
    a("v_lshrrev_b32 v5, 16, v5")
    a("v_mul_u32_u24 v6, 19, v5")
    a("v_sub_u32 v6, v1, v6")
    a("v_cmp_eq_u32 vcc, 18, v6")
    a(f"v_lshl_add_u32 v6, v6, 4, s{sT0}")
    a(f"v_mov_b32 v7, {576*16}")
    a("v_cndmask_b32 v6, v6, v7, vcc")
    a(f"v_mul_u32_u24 v5, {V_RS}, v5")
    a("v_add_u32 v5, v5, v6")
    sRun, sMK, sMV = 42, 44, 46
    a(f"s_mov_b32 s{sMK}, -1")
    a(f"s_mov_b32 s{sMK+1}, {(1 << 22) - 1}")
    a(f"s_mov_b32 s{sMV}, -1")
    a(f"s_mov_b32 s{sMV+1}, {(1 << 25) - 1}")
    a(f"s_mul_i32 s{sRun}, s{sHW}, 3")
    a("s_waitcnt lgkmcnt(0)")
    def piece(i):
        if i == 21: a(f"s_min_u32 s{sRun}, s{sRun}, 1")
        a(f"s_mul_i32 s{sT1}, s{sRun}, 288")
        a(f"s_mul_i32 s{sT2}, s{sRun}, {QK_RS}")
        a(f"s_add_u32 m0, s{sT1}, {12*i*288}")
        a(f"s_add_u32 s{sT2}, s{sT2}, {WS_K + 12*i*QK_RS}")
        a(f"s_mov_b64 exec, {sr(sMK,2)}")
        a(f"buffer_load_dwordx4 v4, {sr(S_WS,4)}, s{sT2} offen lds")
        a(f"s_mul_i32 s{sT1}, s{sRun}, 304")
        a(f"s_mul_i32 s{sT2}, s{sRun}, {V_RS}")
        a(f"s_add_u32 m0, s{sT1}, {LV + 12*i*304}")
        a(f"s_add_u32 s{sT2}, s{sT2}, {WS_V + 12*i*V_RS}")
        a(f"s_mov_b64 exec, {sr(sMV,2)}")
        a(f"buffer_load_dwordx4 v5, {sr(S_WS,4)}, s{sT2} offen lds")
    piece(0)
    a(f"s_mov_b64 exec, {sr(sMK,2)}")
    a(f"s_mul_i32 s{sT3}, s{sQB}, {32*QK_RS}")
    for i in range(3):
        a(f"s_add_u32 s{sT0}, s{sRun}, {12*i}")
        if i == 2: a(f"s_min_u32 s{sT0}, s{sT0}, 29")
        a(f"s_mul_i32 s{sT1}, s{sT0}, 288")
        a(f"s_mul_i32 s{sT2}, s{sT0}, {QK_RS}")
        a(f"s_add_u32 m0, s{sT1}, {LQ}")
        a(f"s_add_u32 s{sT2}, s{sT2}, s{sT3}")
        a(f"buffer_load_dwordx4 v4, {sr(S_WS,4)}, s{sT2} offen lds")
    for i in range(1, 4): piece(i)
    NA = opt("na", 2)
    for i in range(4, 4 + NA): piece(i)
    a("s_mov_b64 exec, -1")
    a(f"v_mov_b32 v3, {LCNT}")
    a("v_mov_b32 v6, 0")
    a("ds_write_b32 v3, v6")
    stamp(a, 1)
    a(f"s_waitcnt vmcnt({2*NA}) lgkmcnt(0)")
    stamp(a, 2)
    a("s_barrier")
    for i in range(4 + NA, 22): piece(i)
    a("s_mov_b64 exec, -1")
    srd(a, S_X, KA_X, S * D * 2)
    srd(a, S_DS, KA_DSKIP, D * 2)
    srd(a, S_GW, KA_GW, D * 2)
    a(f"s_lshr_b32 s{sHB}, s{sTT}, 1")
    a(f"s_and_b32 s{sCG}, s{sTT}, 1")
    a(f"s_lshl_b32 s{sCG}, s{sCG}, 2")
    a(f"s_add_u32 s{sCG}, s{sCG}, s{sQ4}")
    a(f"s_mul_i32 s{sCG}, s{sCG}, 9")
    a(f"s_add_u32 s{sCG}, s{sCG}, 1")
    a(f"s_lshr_b32 s{sCG}, s{sCG}, 1")
    a(f"s_add_u32 s{sCG}, s{sCG}, s{sHW}")
    a(f"s_and_b32 s{sNJ}, s{sQ4}, 1")
    a(f"s_lshl_b32 s{sNJ}, s{sNJ}, 2")
    a(f"s_add_u32 s{sNJ}, s{sNJ}, s{sHW}")
    a("v_and_b32 v3, 15, v1")
    a("v_lshlrev_b32 v3, 3, v3")
    scan_loads(a, "a")
    stamp(a, 3)
    a("s_waitcnt vmcnt(8)")
    a("s_barrier")
    a("s_setprio 3")
    stamp(a, 4)
    if opt("nojob"):
        stamp_flush(a, 5, 1, S_WS, sW, 140)
        a("s_endpgm")
    a.label("k2_h_scan")
    scan_compute(a)
    a(f"s_cmp_lg_u32 s{sNJ}, 2")
    a("s_cbranch_scc1 k2_h_scandone")
    a(f"s_mov_b32 s{sNJ}, 0")
    a(f"s_add_u32 s{sCG}, s{sCG}, 2")
    scan_loads(a, "b")
    a("s_branch k2_h_scan")
    a.label("k2_h_scandone")
    a(f"s_mul_i32 s{sNT}, s{sQ4}, 9")
    a(f"s_lshr_b32 s{sNT}, s{sNT}, 1")
    a(f"s_add_u32 s{sNT}, s{sNT}, s{sHW}")
    a(f"s_and_b32 s{sNJ}, s{sQ4}, 1")
    a(f"s_cmp_eq_u32 s{sHW}, 1")
    a(f"s_cselect_b32 s{sNJ}, s{sNJ}, 0")
    a(f"s_lshl_b32 s{sT4}, s{sHB}, 8")
    a(f"s_add_u32 s{sT4}, s{sT4}, {WS_CNT}")
    a(f"v_mov_b32 v3, {LCNT}")
    a("v_mov_b32 v4, 1")
    a("s_mov_b64 exec, 1")
    a("s_waitcnt vmcnt(0)")
    a("ds_add_rtn_u32 v5, v3, v4")
    a("v_mov_b32 v3, 0")
    a("s_waitcnt lgkmcnt(0)")
    a(f"v_readfirstlane_b32 s{sT0}, v5")
    a(f"s_cmp_lg_u32 s{sT0}, 3")
    a("s_cbranch_scc1 k2_h_nosig")
    a(f"buffer_atomic_add v4, v3, {sr(S_WS,4)}, s{sT4} offen sc1")
    a.label("k2_h_nosig")
    a("s_mov_b64 exec, -1")
    a("v_mov_b32 v3, 0")
    stamp(a, 5)
    a(f"s_mov_b32 s{sIt}, 0")
    a.label("k2_h_poll")
    a(f"buffer_load_dword v4, v3, {sr(S_WS,4)}, s{sT4} offen sc1")
    a(f"s_add_u32 s{sIt}, s{sIt}, 1")
    a("s_waitcnt vmcnt(0)")
    a(f"v_readfirstlane_b32 s{sT0}, v4")
    a(f"s_cmp_ge_u32 s{sT0}, 8")
    a("s_cbranch_scc1 k2_h_job")
    a("s_sleep 8")
    a(f"s_cmp_lt_u32 s{sIt}, 0x200000")
    a("s_cbranch_scc1 k2_h_poll")
    a.label("k2_h_job")
    stamp(a, 6)
    if opt("scanonly"):
        stamp_flush(a, 7, 1, S_WS, sW, 140)
        a("s_endpgm")
    a(f"s_setprio {opt('jprio', 3)}")
    R = opt("ring", 12)
    vAcc, vXf, vDg, vRing = 8, 24, 32, 40
    a(f"s_mul_i32 s{sA_}, s{sTT}, {72*1024}")
    a(f"s_add_u32 s{sA_}, s{sA_}, {WS_HF}")
    a(f"s_mul_i32 s{sB_}, s{sNT}, {72*1024}")
    a(f"s_add_u32 s{sB_}, s{sB_}, {WS_CF}")
    a("v_and_b32 v5, 31, v1")
    a("v_lshlrev_b32 v6, 1, v5")
    a(f"s_lshl_b32 s{sT0}, s{sNT}, 6")
    a(f"buffer_load_ushort v7, v6, {sr(S_DS,4)}, s{sT0} offen")
    a("v_mul_u32_u24 v5, 1152, v5")
    a("v_lshrrev_b32 v6, 5, v1")
    a("v_lshl_add_u32 v5, v6, 4, v5")
    a(f"s_mul_i32 s{sT1}, s{sTT}, {32*1152}")
    a(f"s_add_u32 s{sT1}, s{sT1}, s{sT0}")
    a(f"buffer_load_dwordx4 {vr(vXf,4)}, v5, {sr(S_X,4)}, s{sT1} offen")
    a(f"buffer_load_dwordx4 {vr(vXf+4,4)}, v5, {sr(S_X,4)}, s{sT1} offen offset:32")
    def issue(j):
        B = vRing + 8 * (j % R)
        a(f"buffer_load_dwordx4 {vr(B,4)}, v{vLane16}, {sr(S_WS,4)}, s{sA_} offen offset:{(j%4)*1024} sc1")
        a(f"buffer_load_dwordx4 {vr(B+4,4)}, v{vLane16}, {sr(S_WS,4)}, s{sB_} offen offset:{(j%4)*1024}")
        if j % 4 == 3:
            a(f"s_add_u32 s{sA_}, s{sA_}, 4096")
            a(f"s_add_u32 s{sB_}, s{sB_}, 4096")
    for j in range(R): issue(j)
    a(f"s_waitcnt vmcnt({2*R})")
    a("v_lshl_or_b32 v7, v7, 16, v7")
    diag(a, vDg, 7, 3, 5, 6)
    a(f"v_mfma_f32_32x32x16_bf16 {vr(vAcc,16)}, {vr(vXf,4)}, {vr(vDg,4)}, 0")
    a(f"v_mfma_f32_32x32x16_bf16 {vr(vAcc,16)}, {vr(vXf+4,4)}, {vr(vDg+4,4)}, {vr(vAcc,16)}")
    for j in range(72):
        B = vRing + 8 * (j % R)
        a(f"s_waitcnt vmcnt({2*(min(72, j+R) - j - 1)})")
        if not opt("jobnomfma"): a(f"v_mfma_f32_32x32x16_bf16 {vr(vAcc,16)}, {vr(B,4)}, {vr(B+4,4)}, {vr(vAcc,16)}")
        if j + R < 72: issue(j + R)
    a(f"s_mul_i32 s{sT0}, s{sTT}, 18")
    a(f"s_add_u32 s{sT0}, s{sT0}, s{sNT}")
    a(f"s_lshl_b32 s{sT0}, s{sT0}, 12")
    a(f"s_add_u32 s{sT0}, s{sT0}, {WS_Y}")
    for g in range(4):
        a(f"buffer_store_dwordx4 {vr(vAcc+4*g,4)}, v{vLane16}, {sr(S_WS,4)}, s{sT0} offen offset:{1024*g}")
    a(f"s_add_u32 s{sNT}, s{sNT}, 3")
    a(f"s_cmp_eq_u32 s{sNJ}, 1")
    a(f"s_mov_b32 s{sNJ}, 0")
    a("s_cbranch_scc1 k2_h_job")
    a(f"s_cmp_lg_u32 s{sHW}, 3")
    a("s_cbranch_scc1 k2_h_nogate")
    a("v_lshrrev_b32 v5, 3, v1")
    a("s_lshl_b32 s41, s2, 3")
    a("v_add_u32 v5, s41, v5")
    a("v_and_b32 v4, 7, v1")
    a("v_lshlrev_b32 v4, 4, v4")
    a("v_mul_u32_u24 v3, 1152, v5")
    a("v_add_u32 v3, v3, v4")
    for i in range(9):
        a(f"buffer_load_dwordx4 {vr(8+4*i,4)}, v4, {sr(S_GW,4)}, 0 offen offset:{128*i}")
        a(f"buffer_load_dwordx4 {vr(44+4*i,4)}, v3, {sr(S_X,4)}, 0 offen offset:{128*i}")
    a("v_mov_b32 v6, 0")
    a("s_waitcnt vmcnt(0)")
    for i in range(36):
        a(f"v_dot2_f32_bf16 v6, v{8+i}, v{44+i}, v6")
    a("v_add_f32_dpp v6, v6, v6 quad_perm:[1,0,3,2] row_mask:0xf bank_mask:0xf")
    a("v_add_f32_dpp v6, v6, v6 quad_perm:[2,3,0,1] row_mask:0xf bank_mask:0xf")
    a("v_add_f32_dpp v6, v6, v6 row_half_mirror row_mask:0xf bank_mask:0xf")
    a(f"v_mul_f32 v6, {f32(-LOG2E)}, v6")
    a("v_exp_f32 v6, v6")
    a("v_add_f32 v6, 1.0, v6")
    a("v_rcp_f32 v6, v6")
    a("v_lshlrev_b32 v5, 2, v5")
    a(f"s_mov_b32 s41, {WS_G}")
    a("s_mov_b32 exec_lo, 0x01010101")
    a("s_mov_b32 exec_hi, 0x01010101")
    a(f"buffer_store_dword v6, v5, {sr(S_WS,4)}, s41 offen")
    a("s_mov_b64 exec, -1")
    a.label("k2_h_nogate")
    if common.PROF:
        a("s_waitcnt vmcnt(0)")
        stamp(a, 7)
        stamp_flush(a, 8, 1, S_WS, sW, 140)
    a("s_endpgm")

def gen_k2():
    a = Asm()
    a("s_cmp_ge_u32 s2, 256")
    a("s_cbranch_scc1 k2_end")
    stamp_start(a)
    srd(a, S_WS, KA_WS, WS_SIZE)
    a("v_lshrrev_b32 v2, 6, v0")
    a("v_and_b32 v1, 63, v0")
    a(f"v_readfirstlane_b32 s{sW}, v2")
    a(f"v_lshlrev_b32 v{vLane16}, 4, v1")
    a(f"s_and_b32 s{sHead}, s2, 7")
    a(f"s_lshl_b32 s{sHead}, s{sHead}, 2")
    a(f"s_bfe_u32 s{sQ4}, s2, 0x20003")
    a(f"s_add_u32 s{sHead}, s{sHead}, s{sQ4}")
    a(f"s_lshr_b32 s{sQB}, s2, 5")
    a(f"s_and_b32 s{sTT}, s2, 7")
    a(f"s_lshl_b32 s{sTT}, s{sTT}, 3")
    a(f"s_add_u32 s{sTT}, s{sTT}, s{sQB}")
    a(f"s_cmp_lt_u32 s{sW}, 8")
    a("s_cbranch_scc1 k2_att")
    helper(a)
    a.label("k2_att")
    addr_init(a)
    for r in range(16): a(f"v_mov_b32 v{vNM+r}, 0")
    a(f"s_mov_b32 s{sPass}, 0")
    a(f"s_mul_i32 s{sT0}, s{sW}, {K_TS}")
    a(f"s_add_u32 s{sT0}, s{sT0}, {LQ}")
    a(f"v_add_u32 v6, s{sT0}, v{vKA}")
    stamp(a, 2)
    a("s_waitcnt lgkmcnt(0)")
    a("s_barrier")
    stamp(a, 3)
    kreads(a, vQ, 6, 0)
    a.label("k2_pass")
    kreads(a, vK[0], vKA, 0)
    kreads(a, vK[1], vKA, K_TS)
    vreads(a, vV[0], 0)
    for r in range(16): a(f"v_mov_b32 v{vO+r}, 0")
    for r in range(4):
        a(f"v_mov_b32 v{vV[1]+4+r}, 0")
        a(f"v_mov_b32 v{vP+4+r}, 0")
    a(f"s_mov_b32 s{sIt}, 0")
    a("s_waitcnt lgkmcnt(5)")
    a(f"v_mov_b32 v{vQr+1}, 0")
    a("s_mov_b32 exec_lo, 0")
    a(f"v_mov_b32 v{vQr}, 0")
    a("s_mov_b32 exec_lo, -1")
    a(f"v_mfma_f32_32x32x16_bf16 {vr(vS[0],16)}, {vr(vK[0],4)}, {vr(vQ,4)}, {vr(vNM,16)}")
    a(f"v_mfma_f32_32x32x8_bf16 {vr(vS[0],16)}, {vr(vK[0]+4,2)}, {vr(vQr,2)}, {vr(vS[0],16)}")
    PR = opt("prio", 1)
    if PR == 2:
        a(f"s_cmp_ge_u32 s{sW}, 4")
        a("s_cbranch_scc0 k2_noprio")
        a("s_setprio 1")
        a.label("k2_noprio")
    a(".p2align 3")
    a.label("k2_loop")
    for j in range(U):
        c, n = j & 1, (j + 1) & 1
        Sc, Sn = vS[c], vS[n]
        ex = lambda r: a(f"v_exp_f32 v{Sc+r}, v{Sc+r}")
        cv = lambda k: a(f"v_cvt_pk_bf16_f32 v{vP+k}, v{Sc+2*k}, v{Sc+2*k+1}")
        a("s_waitcnt lgkmcnt(0)")
        if PR == 1: a("s_setprio 0")
        if not opt("noread") or j == 0: kreads(a, vK[c], vKA, (j + 2) * K_TS)
        a(f"v_mfma_f32_32x32x16_bf16 {vr(vO,16)}, {vr(vV[n]+4,4)}, {vr(vP+4,4)}, {vr(vO,16)}")
        if not opt("noread") or j == 0: vreads(a, vV[n], (j + 1) * V_TS)
        for r in range(5): ex(r)
        if PR == 1: a("s_setprio 1")
        a(f"v_mfma_f32_32x32x16_bf16 {vr(Sn,16)}, {vr(vK[n],4)}, {vr(vQ,4)}, {vr(vNM,16)}")
        for r in range(5, 8): ex(r)
        for k in range(4): cv(k)
        a(f"v_mfma_f32_32x32x8_bf16 {vr(Sn,16)}, {vr(vK[n]+4,2)}, {vr(vQr,2)}, {vr(Sn,16)}")
        for r in range(8, 13): ex(r)
        a(f"v_mfma_f32_32x32x16_bf16 {vr(vO,16)}, {vr(vV[c],4)}, {vr(vP,4)}, {vr(vO,16)}")
        for r in range(13, 16): ex(r)
        for k in range(4, 8): cv(k)
    a(f"v_add_u32 v{vKA}, {U*K_TS}, v{vKA}")
    a(f"v_add_u32 v{vVA}, {U*V_TS}, v{vVA}")
    a(f"s_or_b32 s{sT0}, s{sIt}, s{sPass}")
    a(f"s_add_u32 s{sIt}, s{sIt}, 1")
    a(f"s_cmp_lg_u32 s{sT0}, 0")
    a("s_cbranch_scc1 k2_nobar")
    stamp(a, 4)
    a("s_barrier")
    stamp(a, 5)
    a.label("k2_nobar")
    a(f"s_cmp_lt_u32 s{sIt}, {64//U}")
    a("s_cbranch_scc1 k2_loop")
    a(f"v_mfma_f32_32x32x16_bf16 {vr(vO,16)}, {vr(vV[1]+4,4)}, {vr(vP+4,4)}, {vr(vO,16)}")
    a(f"v_add_u32 v{vKA}, {(-64*K_TS) & 0xffffffff}, v{vKA}")
    a(f"v_add_u32 v{vVA}, {(-64*V_TS) & 0xffffffff}, v{vVA}")
    a("s_waitcnt lgkmcnt(0)")
    stamp(a, 6)
    a(f"v_mov_b32 v6, v{vO+10}")
    a(f"v_mov_b32 v7, v{vO+10}")
    a("v_permlane32_swap_b32 v6, v7")
    a(f"s_cmp_lg_u32 s{sPass}, 0")
    a("s_cbranch_scc1 k2_fin")
    a("v_mov_b32 v7, 0")
    for r in range(8): a(f"v_fmac_f32 v7, 0, v{vO+r}")
    a("s_mov_b32 exec_hi, 0")
    for r in range(8, 10): a(f"v_fmac_f32 v7, 0, v{vO+r}")
    a("s_mov_b32 exec_hi, -1")
    a("v_add_f32 v7, v7, v6")
    a(f"s_mov_b32 s{sT0}, {f32(2.0**-16)}")
    a(f"s_mov_b32 s{sT1}, {f32(2.0**64)}")
    a(f"v_cmp_nle_f32 vcc, s{sT0}, v7")
    a(f"v_cmp_nge_f32 s[24:25], s{sT1}, v7")
    a("s_or_b64 vcc, vcc, s[24:25]")
    a("s_cbranch_vccz k2_fin")
    M = vP
    a(f"v_mov_b32 v{M}, 0xff800000")
    a(f"v_mov_b32 v6, v{vKA}")
    a(f"s_mov_b32 s{sIt}, 0")
    a.label("k2_max")
    kreads(a, vK[0], 6, 0)
    a(f"v_add_u32 v6, {K_TS}, v6")
    a("s_waitcnt lgkmcnt(0)")
    a(f"v_mfma_f32_32x32x16_bf16 {vr(vS[0],16)}, {vr(vK[0],4)}, {vr(vQ,4)}, 0")
    a(f"v_mfma_f32_32x32x8_bf16 {vr(vS[0],16)}, {vr(vK[0]+4,2)}, {vr(vQr,2)}, {vr(vS[0],16)}")
    a(f"s_add_u32 s{sIt}, s{sIt}, 1")
    for k in range(8):
        a(f"v_max3_f32 v{M}, v{M}, v{vS[0]+2*k}, v{vS[0]+2*k+1}")
    a(f"s_cmp_lt_u32 s{sIt}, 64")
    a("s_cbranch_scc1 k2_max")
    a(f"v_mov_b32 v6, v{M}")
    a(f"v_permlane32_swap_b32 v6, v{M}")
    a(f"v_max_f32 v6, v6, v{M}")
    for r in range(16): a(f"v_sub_f32 v{vNM+r}, 0, v6")
    a(f"s_mov_b32 s{sPass}, 1")
    a("s_branch k2_pass")
    a.label("k2_fin")
    a("v_rcp_f32 v6, v6")
    a(f"s_lshl_b32 s{sT0}, s{sQB}, 3")
    a(f"s_add_u32 s{sT0}, s{sT0}, s{sW}")
    a(f"s_mul_i32 s{sT0}, s{sT0}, {36*1024}")
    a(f"s_add_u32 s{sT0}, s{sT0}, {WS_OF}")
    a(f"s_lshl_b32 s{sT1}, s{sHead}, 10")
    a(f"s_add_u32 s{sT1}, s{sT1}, s{sT0}")
    for r in range(10): a(f"v_mul_f32 v{vO+r}, v6, v{vO+r}")
    for k in range(5): a(f"v_cvt_pk_bf16_f32 v{vP+k}, v{vO+2*k}, v{vO+2*k+1}")
    a(f"buffer_store_dwordx4 {vr(vP,4)}, v{vLane16}, {sr(S_WS,4)}, s{sT1} offen")
    a(f"s_lshr_b32 s{sT1}, s{sHead}, 2")
    a(f"s_lshl_b32 s{sT1}, s{sT1}, 9")
    a(f"s_and_b32 s{sT2}, s{sHead}, 3")
    a(f"s_lshl_b32 s{sT2}, s{sT2}, 2")
    a(f"s_add_u32 s{sT0}, s{sT0}, s{sT1}")
    a(f"s_add_u32 s{sT0}, s{sT0}, s{sT2}")
    a(f"s_add_u32 s{sT0}, s{sT0}, {32*1024}")
    a("s_mov_b32 exec_hi, 0")
    a(f"buffer_store_dword v{vP+4}, v{vLane16}, {sr(S_WS,4)}, s{sT0} offen")
    if common.PROF:
        a("s_waitcnt vmcnt(0)")
        stamp(a, 7)
        stamp_flush(a, 8, 1, S_WS, sW, 124)
    a.label("k2_end")
    a("s_endpgm")
    return a
```
